```python
import torch

def _softmax(x, axis=-1):
    return torch.softmax(x, dim=axis)
def _gelu(x):
    return torch.nn.functional.gelu(x, approximate="tanh")
def _silu(x):
    return torch.nn.functional.silu(x)
def _sigmoid(x):
    return torch.sigmoid(x)
def _layernorm(x, axis=-1, eps=1e-5):
    m = x.mean(dim=axis, keepdim=True)
    v = x.var(dim=axis, keepdim=True, unbiased=False)
    return (x - m) / torch.sqrt(v + eps)
def _scatter_add(tgt, idx, src, axis=0):
    return tgt.clone().index_add_(axis, idx, src)
def _segment_sum(src, seg, n):
    out = torch.zeros((n,) + src.shape[1:], dtype=src.dtype)
    return out.index_add_(0, seg, src)
def _pad(x, pw):
    flat = tuple(v for pair in reversed(pw) for v in pair)
    return torch.nn.functional.pad(x, flat)

kernel_name = 'parallel_sum__ssm_conv_s4__geglu_ffn__prompt'

def setup_inputs():

    _w = (lambda a: (lambda t: t.to(torch.bfloat16) if t.is_floating_point() else t)(torch.as_tensor(a)))
    def _A_setup():
        B, L, D, N = 1, 2048, 512, 128
        A_re = -(lambda _x: torch.exp(torch.as_tensor(_x)))((lambda *s: torch.randn(*s, dtype=torch.bfloat16) * 3.2)(D, N))
        A_im = torch.pi * (lambda *s: torch.randn(*s, dtype=torch.bfloat16) * 0.2)(D, N)
        B_re = (lambda *s: torch.randn(*s, dtype=torch.bfloat16) * 0.4)(D, N)
        B_im = (lambda *s: torch.randn(*s, dtype=torch.bfloat16) * 0.4)(D, N)
        C_re = (lambda *s: torch.randn(*s, dtype=torch.bfloat16) * 0.4)(D, N)
        C_im = (lambda *s: torch.randn(*s, dtype=torch.bfloat16) * 0.4)(D, N)
        log_dt = (lambda *s: torch.randn(*s, dtype=torch.bfloat16) * 0.2)(D) * 0.5 - 4.0
        Dskip = (lambda *s: torch.randn(*s, dtype=torch.bfloat16) * 0.4)(D)
        return {
            "u": _w((lambda *s: torch.randn(*s, dtype=torch.bfloat16) * 0.05)(B, L, D)),
            "A_re": _w(A_re),
            "A_im": _w(A_im),
            "B_re": _w(B_re),
            "B_im": _w(B_im),
            "C_re": _w(C_re),
            "C_im": _w(C_im),
            "log_dt": _w(log_dt),
            "Dskip": _w(Dskip),
        }
    _A_in = _A_setup()

    def _B_setup():
        B, S, D, F = 1, 2048, 512, 1792
        return {
            "x": _w((lambda *s: torch.randn(*s, dtype=torch.bfloat16) * 0.05)(B, S, D)),
            "w_gate": _w((lambda *s: torch.randn(*s, dtype=torch.bfloat16) * 0.05)(D, F)),
            "w_up": _w((lambda *s: torch.randn(*s, dtype=torch.bfloat16) * 0.05)(D, F)),
            "w_down": _w((lambda *s: torch.randn(*s, dtype=torch.bfloat16) * 0.05)(F, D)),
        }
    _B_in = _B_setup()

    return {
        "A_u": _A_in["u"],
        "A_A_re": _A_in["A_re"],
        "A_A_im": _A_in["A_im"],
        "A_B_re": _A_in["B_re"],
        "A_B_im": _A_in["B_im"],
        "A_C_re": _A_in["C_re"],
        "A_C_im": _A_in["C_im"],
        "A_log_dt": _A_in["log_dt"],
        "A_Dskip": _A_in["Dskip"],
        "B_x": _B_in["x"],
        "B_w_gate": _B_in["w_gate"],
        "B_w_up": _B_in["w_up"],
        "B_w_down": _B_in["w_down"],
    }

def reference(A_u, A_A_re, A_A_im, A_B_re, A_B_im, A_C_re, A_C_im, A_log_dt, A_Dskip, B_x, B_w_gate, B_w_up, B_w_down):
    def _A_ref(u, A_re, A_im, B_re, B_im, C_re, C_im, log_dt, Dskip):
        Bsz, L, D = u.shape
        dt = torch.exp(log_dt)[:, None]
        A = A_re + 1j * A_im
        Bc = B_re + 1j * B_im
        Cc = C_re + 1j * C_im
        logdA = dt * A
        dB = dt * Bc
        l = (lambda x, dt: x.to(dt))(torch.arange(L), A_re.dtype)
        P = torch.exp(logdA[:, :, None] * l[None, None, :])
        K = torch.einsum("dn,dnl,dn->dl", Cc, P, dB).real
        L2 = 2 * L
        Kp = _pad(K, ((0, 0), (0, L)))
        up = (lambda x, *d: x.permute(*d))(u, 0, 2, 1)
        up = _pad(up, ((0, 0), (0, 0), (0, L)))
        Kf = (lambda x, axes=(-2,-1): torch.fft.rfft2(x.float(), dim=axes))(Kp[:, None, :], axes=(-2, -1))
        Uf = (lambda x, axes=(-2,-1): torch.fft.rfft2(x.float(), dim=axes))(up[:, :, None, :], axes=(-2, -1))
        Yf = Uf * Kf[None, :, :, :]
        y = (lambda x, s, axes=(-2,-1): torch.fft.irfft2(x, s=s, dim=axes).to(torch.bfloat16))(Yf, (1, L2), axes=(-2, -1))[:, :, 0, :L]
        y = (lambda x, *d: x.permute(*d))(y, 0, 2, 1) + u * Dskip[None, None, :]
        return y

    def _B_ref(x, w_gate, w_up, w_down):
        return (_gelu(x @ w_gate) * (x @ w_up)) @ w_down

    x = A_u
    xn = _layernorm(x, axis=-1)
    return x + _A_ref(xn, A_A_re, A_A_im, A_B_re, A_B_im, A_C_re, A_C_im, A_log_dt, A_Dskip) + _B_ref(xn, B_w_gate, B_w_up, B_w_down)
```

```python
import re

TRANS = ("v_exp_f32","v_log_f32","v_rcp_f32","v_rsq_f32","v_sqrt_f32","v_sin_f32","v_cos_f32","v_rcp_iflag_f32")
RMW = ("v_dot2c_","v_fmac_","v_mac_","v_dot4c_","v_dot8c_")

def parse_regs(tok):
    tok = tok.strip()
    neg = tok.lstrip("-|").rstrip("|")
    if neg.startswith("abs(") or neg.startswith("neg("): neg = neg[4:-1]
    m = re.fullmatch(r"([vsa])\[(\d+):(\d+)\]", neg)
    if m: return {(m.group(1), i) for i in range(int(m.group(2)), int(m.group(3)) + 1)}
    m = re.fullmatch(r"([vsa])(\d+)", neg)
    if m: return {(m.group(1), int(m.group(2)))}
    if neg in ("vcc", "vcc_lo", "vcc_hi"): return {("vcc", 0)}
    if neg in ("exec", "exec_lo", "exec_hi"): return {("exec", 0)}
    if neg == "m0": return {("m0", 0)}
    return set()

class I:
    def __init__(self, text):
        self.text = text
        t = text.split(";")[0].strip()
        self.label = None; self.op = None
        if not t or t.startswith("."):
            if t.endswith(":"): self.label = t[:-1]
            self.kind = "none"; return
        if t.endswith(":"):
            self.label = t[:-1]; self.kind = "none"; return
        sp = t.split(None, 1)
        self.op = op = sp[0]
        rest = sp[1] if len(sp) > 1 else ""
        ops = []; depth = 0; cur = ""
        for ch in rest:
            if ch in "[(": depth += 1
            if ch in "])": depth -= 1
            if ch == "," and depth == 0: ops.append(cur.strip()); cur = ""
            else: cur += ch
        if cur.strip(): ops.append(cur.strip())
        mods = ""
        if ops:
            last = ops[-1].split(None, 1)
            ops[-1] = last[0]
            if len(last) > 1: mods = last[1]
        self.ops = ops; self.mods = mods
        R = [parse_regs(o) for o in ops]
        U = lambda l: set().union(*l) if l else set()
        self.w = set(); self.r = set(); self.srcC = set(); self.srcAB = set(); self.sdata = set()
        self.states = 1
        self.dpp = ("_dpp" in op) or any(k in mods for k in ("quad_perm", "row_shr", "row_shl", "row_ror", "wave_", "row_mirror", "row_half_mirror", "row_bcast", "row_newbcast"))
        if op.startswith("v_mfma"):
            self.kind = "mfma"; self.w = R[0]; self.srcAB = R[1] | R[2]; self.srcC = R[3]; self.r = self.srcAB | self.srcC
            self.passes = 8 if "32x32x16" in op else 4 if "16x16x32" in op else 2 if "4x4x4" in op else None
            assert self.passes
        elif op.startswith("v_"):
            self.kind = "valu"
            if op.startswith("v_cmp"):
                self.w = R[0]; self.r = U(R[1:])
                if op.startswith("v_cmpx"): raise Exception("no cmpx")
            elif "swap" in op:
                self.w = R[0] | R[1]; self.r = R[0] | R[1]
            elif re.match(r"v_(add|sub|subrev)_co_|v_(addc|subb|subbrev)_co_|v_div_scale|v_mad_u64", op):
                self.w = R[0] | R[1]; self.r = U(R[2:])
            elif op == "v_nop":
                pass
            else:
                self.w = R[0]; self.r = U(R[1:])
                if op.startswith(RMW) or "dst_unused:UNUSED_PRESERVE" in mods or (self.dpp and "bound_ctrl" not in mods) or op.startswith("v_writelane"): self.r |= R[0]
                if op.startswith("v_cndmask") and len(ops) == 3: self.r |= {("vcc", 0)}
            self.trans = op.startswith(TRANS)
            self.dot = op.startswith("v_dot")
            if self.dot:
                if op.startswith("v_dot2c"): self.srcC = R[0]; self.srcAB = R[1] | R[2]
                else: self.srcC = R[3]; self.srcAB = R[1] | R[2]
        elif op.startswith("ds_"):
            self.kind = "ds"
            if op.startswith("ds_read") or "_rtn" in op or "permute" in op or "swizzle" in op:
                self.w = R[0]; self.r = U(R[1:])
                if "d16" in op: self.r |= R[0]
            else: self.r = U(R)
        elif op.startswith("buffer_") or op.startswith("global_"):
            self.kind = "vmem"
            lds = (" lds" in " " + mods) or "_lds_" in op
            self.ldsdma = lds
            if op in ("buffer_wbl2", "buffer_inv"): pass
            elif lds: self.r = U(R) | {("m0", 0)}
            elif "_load" in op:
                self.w = R[0]; self.r = U(R[1:])
            elif "_store" in op:
                self.r = U(R)
                d = R[0] if op.startswith("buffer") else R[1]
                if len(d) >= 3: self.sdata = d
            elif "_atomic" in op:
                if "sc0" in mods:
                    if op.startswith("buffer"): self.w = R[0]; self.r = U(R)
                    else: self.w = R[0]; self.r = U(R[1:])
                else: self.r = U(R)
            else: raise Exception("vmem? " + text)
        elif op.startswith("s_"):
            self.kind = "salu"
            if op == "s_nop": self.states = int(ops[0], 0) + 1
            elif op.startswith(("s_cmp", "s_branch", "s_cbranch", "s_waitcnt", "s_barrier", "s_endpgm", "s_sleep", "s_setprio", "s_bitcmp", "s_setpc")):
                self.r = U(R)
            else:
                self.w = R[0] if R else set(); self.r = U(R[1:])
                if "saveexec" in op: self.w = self.w | {("exec", 0)}
        else:
            raise Exception("unknown instr " + text)

def need(p, c):
    n = 0
    vw = {x for x in p.w if x[0] in "va"}
    sw = {x for x in p.w if x[0] in ("s", "vcc")}
    if p.kind == "valu":
        if c.kind == "mfma" and vw & c.r: n = max(n, 3 if p.dot else 2)
        if p.dot:
            if c.kind == "valu" and c.dot and c.op == p.op:
                if vw & c.srcAB: n = max(n, 3)
            elif vw & (c.r | c.w): n = max(n, 3)
        if p.trans and vw & c.r: n = max(n, 1)
        if c.kind == "valu":
            if c.dpp and vw & c.r: n = max(n, 2)
            if "permlane" in c.op and vw & c.r: n = max(n, 2)
            if c.op.startswith(("v_readlane", "v_readfirstlane")) and vw & c.r: n = max(n, 1)
            if sw & c.r: n = max(n, 4 if c.op.startswith(("v_readlane", "v_writelane", "v_div_fmas")) else 2)
            if ("dst_sel:WORD" in p.mods or "dst_sel:BYTE" in p.mods) and vw & (c.r | c.w): n = max(n, 1)
        if c.kind == "mfma" and sw & c.r: n = max(n, 2)
        if c.kind == "vmem" and sw & c.r: n = max(n, 5)
    elif p.kind in ("ds", "vmem"):
        if c.kind == "valu" and c.dpp and vw & c.r: n = max(n, 2)
        if p.sdata and (p.sdata & c.w): n = max(n, 2 if c.kind in ("valu", "mfma") else 1)
    elif p.kind == "mfma":
        big = {2: 5, 4: 8, 8: 12}[p.passes]
        if c.kind == "mfma":
            if vw & c.srcAB: n = max(n, big)
            if vw & c.srcC:
                if vw == c.srcC and c.passes == p.passes: n = max(n, 2 if p.passes == 2 else 0)
                else: n = max(n, {2: 4, 4: 6, 8: 10}[p.passes])
            elif vw & c.w: n = max(n, big)
        elif c.kind in ("valu", "ds", "vmem"):
            if vw & (c.r | c.w): n = max(n, big)
            if p.srcC & c.w: n = max(n, {2: 1, 4: 3, 8: 7}[p.passes])
    elif p.kind == "salu":
        if ("m0", 0) in p.w and c.kind == "vmem" and getattr(c, "ldsdma", False): n = max(n, 1)
    return n

def fix_hazards(lines, verbose=False):
    ins = [I(l) for l in lines]
    total = 0
    while True:
        lab = {i.label: k for k, i in enumerate(ins) if i.label}
        fix = {}
        for k, p in enumerate(ins):
            if p.kind == "none" or not (p.w or p.sdata or p.srcC): continue
            if p.kind == "salu" and ("m0", 0) not in p.w: continue
            maxd = 12 if p.kind == "mfma" else 5
            stack = [(k + 1, 0)]; seen = set()
            while stack:
                j, d = stack.pop()
                while j < len(ins) and d < maxd:
                    if (j, d) in seen: break
                    seen.add((j, d))
                    c = ins[j]
                    if c.kind == "none": j += 1; continue
                    nd = need(p, c)
                    if nd > d: fix[j] = max(fix.get(j, 0), nd - d)
                    d += c.states
                    if c.op == "s_endpgm": break
                    if c.op.startswith(("s_branch", "s_cbranch")):
                        stack.append((lab[c.ops[0]], d))
                        if c.op == "s_branch": break
                    j += 1
        if not fix: break
        new = []; lastfix = -100
        for k, i in enumerate(ins):
            if k in fix and k - lastfix > 14:
                n = fix[k]; total += n
                if verbose: print("nop", n, "before", i.text)
                new.append(I(f"s_nop {n-1}"))
                lastfix = k
            new.append(i)
        ins = new
    return [i.text for i in ins], total

class Asm:
    def __init__(self): self.L = []
    def __call__(self, s):
        for l in s.split("\n"):
            l = l.strip()
            if l: self.L.append(l)
    def label(self, n): self.L.append(n + ":")

def kernel_text(name, lines, vgpr, accum, sgpr=102):
    body = "\n".join(("    " + l) if not l.endswith(":") else l for l in lines)
    return f""".text
.globl {name}
.p2align 8
.type {name},@function
{name}:
{body}
"""
def kernel_desc(name, vgpr, accum, sgpr=102):
    return f""".section .rodata,"a"
.p2align 6
.amdhsa_kernel {name}
  .amdhsa_next_free_vgpr {vgpr}
  .amdhsa_next_free_sgpr {sgpr}
  .amdhsa_accum_offset {accum}
  .amdhsa_group_segment_fixed_size 0
  .amdhsa_kernarg_size 128
  .amdhsa_user_sgpr_count 2
  .amdhsa_user_sgpr_kernarg_segment_ptr 1
  .amdhsa_system_sgpr_workgroup_id_x 1
.end_amdhsa_kernel
"""
import struct
def f2u(f): return struct.unpack("<I", struct.pack("<f", f))[0]
def fhex(f): return "0x%08x" % f2u(f)
```

```python
import math
from fw import *

H_OFF = 0x0
XNT_OFF = 0x800000
KR_OFF = 0xA00000
YT_OFF = 0xC00000
FLAG_OFF = 0xEC0000
STAMP_OFF = 0xF00000
STAMPB_OFF = 0xF40000
WS_SIZE = 0x1000000

LOG2E = 1.4426950408889634
def split_hi(c, bits):
    m, e = math.frexp(c); hi = math.ldexp(round(m * (1 << bits)), e - bits); return hi, c - hi

def cmul(A, d, x, e):
    A(f"v_pk_mul_f32 v[{d}:{d+1}], v[{x}:{x+1}], v[{e}:{e+1}] op_sel:[0,0] op_sel_hi:[0,1]")
    A(f"v_pk_fma_f32 v[{d}:{d+1}], v[{x}:{x+1}], v[{e}:{e+1}], v[{d}:{d+1}] op_sel:[1,1,0] op_sel_hi:[1,0,1] neg_lo:[0,1,0]")

def stamp(A, opt, idx):
    if opt.get("stamps"):
        A(f"s_memtime s[{80+2*idx}:{81+2*idx}]")

def gen_ka(opt):
    A = Asm()
    ld = opt.get("ldflag", "")
    XS, WB, TB, CS = 0, 65536, 98304, 114688
    A("s_cmp_ge_u32 s2, 256")
    A("s_cbranch_scc1 .LA_end")
    stamp(A, opt, 0)
    if opt.get("stamps"): A("s_memrealtime s[76:77]")
    A("s_load_dwordx16 s[16:31], s[0:1], 0")
    A("s_load_dwordx4 s[32:35], s[0:1], 80")
    A("s_load_dwordx2 s[52:53], s[0:1], 120")
    A("s_getpc_b64 s[4:5]")
    A(".LA_pc:")
    A("v_lshlrev_b32 v1, 7, v0")
    A("v_min_u32 v1, CODE_END-.LA_pc-4, v1")
    if opt.get("codepf", 1): A("global_load_dword v255, v1, s[4:5]")
    A("v_lshrrev_b32 v2, 6, v0")
    A("v_and_b32 v1, 63, v0")
    A("v_readfirstlane_b32 s3, v2")
    A("s_and_b32 s6, s2, 7")
    A("s_lshr_b32 s7, s2, 3")
    A("s_lshr_b32 s8, s3, 2")
    A("s_lshl_b32 s9, s2, 1")
    A("s_add_u32 s9, s9, s8")
    A("s_and_b32 s10, s3, 1")
    A("s_lshl_b32 s11, s9, 8")
    A("s_lshl_b32 s12, s10, 7")
    A("s_add_u32 s11, s11, s12")
    A("v_lshl_add_u32 v34, v1, 1, s11")
    A("s_lshl_b32 s12, s9, 1")
    A("v_mov_b32 v35, s12")
    for r in range(36, 43): A(f"v_mov_b32 v{r}, 0")
    A("s_lshr_b32 s13, s6, 2")
    A("s_and_b32 s14, s6, 3")
    A("s_and_b32 s15, s7, 3")
    A("s_lshl_b32 s56, s13, 2")
    A("s_add_u32 s56, s56, s15")
    A("s_lshr_b32 s57, s7, 2")
    A("s_mul_i32 s58, s14, 7")
    A("s_add_u32 s58, s58, s57")
    A("s_add_u32 s59, s56, s57")
    A("s_lshl_b32 s59, s59, 1")
    A("s_and_b32 s59, s59, 7")
    if opt.get("norot"): A("s_mov_b32 s59, 0")
    A("s_lshl_b32 s60, s56, 3")
    A("s_add_u32 s60, s60, s3")
    A("s_lshl_b32 s61, s60, 15")
    A("s_lshl_b32 s62, s58, 7")
    A("s_lshl_b32 s63, s3, 12")
    A("s_lshl_b32 s64, s3, 11")
    A(f"s_add_u32 s64, s64, {WB}")
    A("v_lshrrev_b32 v8, 3, v1")
    A("v_and_b32 v9, 7, v1")
    A("v_lshrrev_b32 v10, 4, v1")
    A("v_xor_b32 v11, v9, v10")
    A("v_lshlrev_b32 v11, 4, v11")
    A("v_lshl_add_u32 v2, v8, 10, v11")
    A("v_xor_b32 v3, 64, v2")
    A("v_add_u32 v3, 7168, v3")
    A("v_add_u32 v4, 14336, v2")
    A("v_add_u32 v5, 14336, v3")
    A("v_and_b32 v10, 1, v10")
    A("v_lshlrev_b32 v10, 1, v10")
    A("v_xor_b32 v10, v9, v10")
    A("v_lshlrev_b32 v10, 4, v10")
    A("s_lshl_b32 s12, s3, 3")
    A("v_add_u32 v11, s12, v8")
    A("v_mul_u32_u24 v11, 3584, v11")
    A("v_add_u32 v6, v11, v10")
    A("v_xor_b32 v7, 64, v6")
    A("s_waitcnt lgkmcnt(0)")
    for r, sb in ((36, 30), (37, 18), (38, 20), (39, 22), (40, 24), (41, 26), (42, 28)):
        A(f"global_load_short_d16_hi v{r}, v{35 if r == 36 else 34}, s[{sb}:{sb+1}]")
    A("s_mov_b64 s[40:41], s[16:17]"); A("s_mov_b32 s42, 0x200000"); A("s_mov_b32 s43, 0x20000")
    A("s_mov_b64 s[44:45], s[32:33]"); A(f"s_mov_b32 s46, {512*3584}"); A("s_mov_b32 s47, 0x20000")
    A("s_mov_b64 s[48:49], s[34:35]"); A(f"s_mov_b32 s50, {512*3584}"); A("s_mov_b32 s51, 0x20000")
    A(f"s_mov_b32 s54, {WS_SIZE}"); A("s_mov_b32 s55, 0x20000")
    A("s_cmp_ge_u32 s7, 28")
    A("s_cbranch_scc1 .LA_auxload")

    def dma(i):
        A(f"s_add_u32 s65, s59, {i}")
        A("s_and_b32 s65, s65, 7")
        A("s_lshl_b32 s66, s65, 7")
        A("s_add_u32 s66, s66, s61")
        A(f"s_add_u32 m0, s63, {(i%2)*32768}")
        A(f"s_mul_i32 s67, s65, {64*3584}")
        for q in range(4):
            A(f"buffer_load_dwordx4 v{2+q}, s[40:43], s66 offen offset:{q*1024} lds{ld}")
        A(f"s_add_u32 m0, s64, {(i%3)*16384}")
        A("s_add_u32 s67, s67, s62")
        A(f"buffer_load_dwordx4 v6, s[44:47], s67 offen lds{ld}")
        A(f"s_add_u32 m0, s64, {(i%3)*16384+1024}")
        A("s_nop 0")
        A(f"buffer_load_dwordx4 v7, s[48:51], s67 offen lds{ld}")
    dma(0); dma(1)
    A("s_branch .LA_kgen")
    A(".LA_auxload:")
    A("s_lshl_b32 s65, s13, 4")
    A("s_lshl_b32 s66, s14, 2")
    A("s_add_u32 s65, s65, s66")
    A("s_add_u32 s65, s65, s7")
    A("s_sub_u32 s65, s65, 28")
    A("s_lshl_b32 s66, s65, 3")
    A("s_add_u32 s66, s66, s3")
    A("s_lshl_b32 s66, s66, 13")
    A("v_lshlrev_b32 v10, 4, v9")
    A("v_lshl_add_u32 v10, v8, 10, v10")
    for q in range(8):
        A(f"buffer_load_dwordx4 v[{208+4*q}:{211+4*q}], v10, s[40:43], s66 offen offset:{q*128}{ld}")
    for q in range(4):
        A(f"buffer_load_dword v{240+q}, v10, s[40:43], s66 offen")
    A(".LA_kgen:")
    A("s_lshr_b32 s68, s3, 1")
    A("s_lshl_b32 s68, s68, 14")
    A("s_lshl_b32 s69, s10, 8")
    A("s_add_u32 s68, s68, s69")
    A(f"s_add_u32 s68, s68, {TB}")
    A("v_lshl_add_u32 v44, v1, 2, s68")
    for j in range(1, 16): A(f"v_xor_b32 v{44+j}, {j<<4}, v44")
    A("v_and_b32 v60, 31, v1")
    A("v_lshrrev_b32 v61, 5, v1")
    A("s_and_b32 s70, s3, 3")
    A("v_bfe_u32 v62, v1, 1, 3")
    A("v_xor_b32 v62, v62, v61")
    A("s_lshl_b32 s71, s70, 1")
    A("v_xor_b32 v62, s71, v62")
    A("v_lshlrev_b32 v62, 4, v62")
    A("v_lshl_add_u32 v62, v60, 7, v62")
    A("v_add_u32 v8, s63, v62")
    for kp in range(1, 4): A(f"v_xor_b32 v{8+kp}, {kp*32}, v8")
    A("v_lshrrev_b32 v62, 4, v1")
    A("v_lshlrev_b32 v16, 10, v62")
    A("v_bfe_u32 v63, v1, 2, 2")
    A("v_lshl_add_u32 v16, v63, 7, v16")
    A("v_and_b32 v63, 3, v1")
    A("v_lshl_add_u32 v16, v63, 3, v16")
    A("v_bfe_u32 v63, v1, 3, 2")
    A("v_lshl_add_u32 v16, v63, 5, v16")
    A("s_lshl_b32 s71, s8, 6")
    A("s_lshl_b32 s72, s70, 12")
    A("s_add_u32 s71, s71, s72")
    A(f"s_add_u32 s71, s71, {WB}")
    A("v_xor_b32 v16, s71, v16")
    for kp in range(4):
        for tp in range(4):
            if kp or tp: A(f"v_xor_b32 v{16+kp*4+tp}, {kp*4096+tp*32}, v16")
    for r in (12, 13, 14, 15, 32, 33): A(f"v_mov_b32 v{r}, 0")
    A("s_mov_b32 s73, 0x3f803f80")
    stamp(A, opt, 1)
    A("s_waitcnt vmcnt(12)")
    stamp(A, opt, 2)
    chi, clo = split_hi(LOG2E, 16)
    A(f"v_mul_f32 v64, {fhex(chi)}, v36")
    A("v_rndne_f32 v65, v64")
    A("v_sub_f32 v64, v64, v65")
    A(f"v_fmac_f32 v64, {fhex(clo)}, v36")
    A("v_exp_f32 v64, v64")
    A("v_cvt_i32_f32 v65, v65")
    A("v_ldexp_f32 v64, v64, v65")
    A("v_cvt_pk_bf16_f32 v64, v64, v64")
    A("v_lshlrev_b32 v64, 16, v64")
    A("v_mul_f32 v37, v64, v37")
    A("v_mul_f32 v38, v64, v38")
    A(f"v_mul_f32 v37, {fhex(LOG2E)}, v37")
    A(f"v_mul_f32 v38, {fhex(1/(2*math.pi))}, v38")
    def direct(d, pos, t):
        if pos == 1:
            A(f"v_exp_f32 v{t}, v37"); A(f"v_fract_f32 v{t+1}, v38")
        else:
            A(f"v_mul_f32 v{t}, {fhex(float(pos))}, v37"); A(f"v_mul_f32 v{t+1}, {fhex(float(pos))}, v38")
            A(f"v_exp_f32 v{t}, v{t}"); A(f"v_fract_f32 v{t+1}, v{t+1}")
        A(f"v_cos_f32 v{d}, v{t+1}"); A(f"v_sin_f32 v{d+1}, v{t+1}")
        A(f"v_pk_mul_f32 v[{d}:{d+1}], v[{d}:{d+1}], v[{t}:{t+1}] op_sel:[0,0] op_sel_hi:[1,0]")
    tmpc = [0]
    def put(row, z, neg):
        t = 200 + (tmpc[0] % 6); tmpc[0] += 1
        A(f"v_cvt_pk_bf16_f32 v{t}, v{z}, {'-' if neg else ''}v{z+1}")
        rows = row if isinstance(row, list) else [row]
        for rr in rows: A(f"ds_write_b32 v{44+(rr&15)}, v{t} offset:{rr*512}")
    A("s_bitcmp1_b32 s3, 1")
    A("s_cbranch_scc1 .LA_ytab")
    A("v_mul_f32 v66, v64, v39"); A("v_mul_f32 v67, v64, v40")
    A("v_mov_b32 v68, v41"); A("v_mov_b32 v69, v42")
    direct(70, 8, 72)
    cmul(A, 74, 68, 66)
    cmul(A, 72, 70, 70)
    cmul(A, 76, 74, 70)
    cur = [74, 76]; nxt = [78, 80]
    for i in range(0, 32, 2):
        if i + 2 < 32:
            cmul(A, nxt[0], cur[0], 72); cmul(A, nxt[1], cur[1], 72)
        put(i, cur[0], False); put(i + 1, cur[1], False)
        cur, nxt = nxt, cur
    A("s_branch .LA_ktab_done")
    A(".LA_ytab:")
    rowof = lambda r, hh: (r & 3) + 8 * (r >> 2) + 4 * hh
    posrows = {}
    lay = {0: [0,1,2,3,4,5,6,7,512,516,520,1024,1032,1536,1544], 1: [256,256,258,260,260,260,262,264,768,772,776,1280,1288,1792,1800]}
    for hh in (0, 1):
        for r, p in enumerate(lay[hh]): posrows.setdefault(p, []).append(rowof(r, hh))
    reg = {}
    nreg = [66]
    def new(p):
        reg[p] = nreg[0]; nreg[0] += 2; return reg[p]
    direct(new(1), 1, 196)
    direct(new(256), 256, 198)
    A("v_mov_b32 v206, 0x3f80")
    for rr in posrows[0]: A(f"ds_write_b32 v{44+(rr&15)}, v206 offset:{rr*512}")
    pend = [1, 256]
    plan = [(2,1,1),(512,256,256),(3,2,1),(4,2,2),(768,512,256),(1024,512,512),(258,256,2),(8,4,4),(5,4,1),(6,4,2),(7,4,3),
            (1280,1024,256),(1536,1024,512),(1792,1024,768),(260,256,4),(516,512,4),(772,768,4),(262,256,6),(264,256,8),(520,512,8),(776,768,8),
            (1032,1024,8),(1288,1280,8),(1544,1536,8),(1800,1792,8)]
    for (p, a, b) in plan:
        assert a + b == p
        cmul(A, new(p), reg[a], reg[b])
        if pend:
            q = pend.pop(0)
            if q in posrows: put(posrows[q], reg[q], True)
        pend.append(p)
    for q in pend:
        if q in posrows: put(posrows[q], reg[q], True)
    A(".LA_ktab_done:")
    A("s_waitcnt lgkmcnt(0)")
    A("s_barrier")
    stamp(A, opt, 3)
    A("s_mul_i32 s68, s8, 5")
    A("s_cmp_lg_u32 s68, s3")
    A("s_cbranch_scc1 .LA_kdone")
    A("v_and_b32 v62, 15, v1")
    A("v_xor_b32 v62, v62, v61")
    A("v_lshlrev_b32 v62, 4, v62")
    A("v_lshl_add_u32 v62, v60, 9, v62")
    A("s_lshl_b32 s68, s8, 15")
    A(f"s_add_u32 s68, s68, {TB}")
    A("v_add_u32 v44, s68, v62")
    for j in range(1, 8): A(f"v_xor_b32 v{44+j}, {j<<5}, v44")
    def kread(ks):
        A(f"ds_read_b128 v[{64+8*ks}:{67+8*ks}], v{44+(ks&7)} offset:{(ks>>3)*256+16384}")
        A(f"ds_read_b128 v[{68+8*ks}:{71+8*ks}], v{44+(ks&7)} offset:{(ks>>3)*256}")
    for ks in range(6): kread(ks)
    for ks in range(16):
        if ks + 6 < 16: kread(ks + 6)
        A(f"s_waitcnt lgkmcnt({2*min(6, 15-ks)})")
        A(f"v_mfma_f32_32x32x16_bf16 v[192:207], v[{64+8*ks}:{67+8*ks}], v[{68+8*ks}:{71+8*ks}], {'0' if ks == 0 else 'v[192:207]'}")
    A("v_and_b32 v62, 1, v1")
    A("v_cmp_eq_u32 vcc, 0, v62")
    A("v_lshlrev_b32 v63, 4, v1")
    A("s_lshl_b32 s68, s9, 12")
    A(f"s_add_u32 s68, s68, {KR_OFF}")
    a = lambda r: f"v{192+r}"
    pk = lambda d, lo, hi: A(f"v_cvt_pk_bf16_f32 v{d}, {lo}, {hi}")
    pk(64, a(0), a(1)); pk(65, a(2), a(3)); pk(66, a(4), a(5)); pk(67, a(6), a(7))
    A("buffer_store_dwordx4 v[64:67], v63, s[52:55], s68 offen")
    pk(68, a(8), a(8)); pk(69, a(8), a(9)); pk(70, a(9), a(9)); pk(71, a(10), a(10))
    A("buffer_store_dwordx4 v[68:71], v63, s[52:55], s68 offen offset:1024")
    for (z, b, off) in ((11, 72, 2048), (13, 76, 3072)):
        A(f"v_cndmask_b32 v62, {a(z+1)}, {a(z)}, vcc")
        pk(b, a(z), a(z)); A(f"v_mov_b32 v{b+1}, v{b}"); pk(b+2, "v62", a(z+1)); pk(b+3, a(z+1), a(z+1))
        A(f"buffer_store_dwordx4 v[{b}:{b+3}], v63, s[52:55], s68 offen offset:{off}")
    A("s_lshl_b32 s68, s2, 2")
    A(f"s_add_u32 s68, s68, {FLAG_OFF}")
    A("v_mov_b32 v62, 0")
    A("buffer_store_dword v62, v62, s[52:55], s68 offen")
    A(".LA_kdone:")
    A("s_cmp_ge_u32 s7, 28")
    A("s_cbranch_scc1 .LA_aux")
    ACC = 64; XF = 128; WF = 144; D = 4
    def wread(n, slot):
        kp, tp = n >> 2, n & 3
        b = WF + 4 * (n & 7)
        A(f"ds_read_b64_tr_b16 v[{b}:{b+1}], v{16+n} offset:{slot*16384}")
        A(f"ds_read_b64_tr_b16 v[{b+2}:{b+3}], v{16+n} offset:{slot*16384+512}")
    for i in range(8):
        A(f"s_waitcnt vmcnt({6 if i < 7 else 0})")
        A("s_barrier")
        if i in (0, 4): stamp(A, opt, 4 + i // 4)
        for kp in range(4): A(f"ds_read_b128 v[{XF+4*kp}:{XF+4*kp+3}], v{8+kp} offset:{(i%2)*32768}")
        for n in range(D): wread(n, i % 3)
        A(f"s_waitcnt lgkmcnt({2*D})")
        if i + 2 < 8: dma(i + 2)
        for n in range(16):
            kp, tp = n >> 2, n & 3
            if n + D < 16: wread(n + D, i % 3)
            A(f"s_waitcnt lgkmcnt({2*min(D, 15-n)})")
            b = WF + 4 * (n & 7)
            c = f"v[{ACC+16*tp}:{ACC+16*tp+15}]"
            A(f"v_mfma_f32_32x32x16_bf16 {c}, v[{b}:{b+3}], v[{XF+4*kp}:{XF+4*kp+3}], {'0' if (i == 0 and kp == 0) else c}")
            if not opt.get("nostats"):
                x = XF + n
                A(f"v_dot2c_f32_bf16 v{12+(n&1)}, s73, v{x}")
                A(f"v_dot2c_f32_bf16 v{14+(n&1)}, v{x}, v{x}")
                if n < 2:
                    for q in range(4): A(f"v_dot2c_f32_bf16 v{32+n}, s73, v{b+q}")
            if i == 7 and n == 3:
                A("s_lshl_b32 s68, s8, 11")
                A("s_lshl_b32 s69, s70, 2")
                A("s_add_u32 s69, s69, s68")
                A(f"s_add_u32 s69, s69, {CS}")
                A("v_lshlrev_b32 v62, 1, v61")
                A("v_lshl_add_u32 v62, v60, 4, v62")
                A("v_add_u32 v62, s69, v62")
                for tp2 in range(2):
                    A(f"v_cvt_pk_bf16_f32 v{34+tp2}, v{32+tp2}, v{32+tp2}")
                    A(f"v_and_b32 v{36+tp2}, 0xffff0000, v{34+tp2}")
                    A(f"v_sub_f32 v{36+tp2}, v{32+tp2}, v{36+tp2}")
                    A(f"v_cvt_pk_bf16_f32 v{36+tp2}, v{36+tp2}, v{36+tp2}")
            if i == 7 and n == 12:
                pass
    for tp2 in range(2):
        A(f"ds_write_b16 v62, v{34+tp2} offset:{tp2*1024}")
        A(f"ds_write_b16 v62, v{36+tp2} offset:{tp2*1024+512}")
    A("v_add_f32 v12, v12, v13")
    A("v_add_f32 v14, v14, v15")
    A("v_mov_b32 v13, v12")
    A("v_mov_b32 v15, v14")
    A("s_waitcnt lgkmcnt(0)")
    A("s_barrier")
    stamp(A, opt, 6)
    A(f"s_add_u32 s69, s68, {CS}")
    A("v_lshl_add_u32 v62, v1, 4, s69")
    A("v_xor_b32 v63, 2048, v62")
    for tp in range(4):
        A(f"ds_read_b128 v[{WF+4*tp}:{WF+4*tp+3}], v{62+(tp>>1)} offset:{(tp&1)*1024}")
    A("v_permlane32_swap_b32 v12, v13")
    A("v_permlane32_swap_b32 v14, v15")
    A("v_add_f32 v12, v12, v13")
    A("v_add_f32 v14, v14, v15")
    A(f"v_mul_f32 v12, {fhex(1/512)}, v12")
    A(f"v_mul_f32 v14, {fhex(1/512)}, v14")
    A(f"v_cvt_pk_bf16_f32 v{XF}, -v12, -v12")
    A("v_fma_f32 v14, -v12, v12, v14")
    for q in range(1, 4): A(f"v_mov_b32 v{XF+q}, v{XF}")
    A("v_max_f32 v14, 0, v14")
    A("v_cvt_pk_bf16_f32 v14, v14, v14")
    A("s_waitcnt lgkmcnt(0)")
    for tp in range(4):
        c = f"v[{ACC+16*tp}:{ACC+16*tp+15}]"
        A(f"v_mfma_f32_32x32x16_bf16 {c}, v[{WF+4*tp}:{WF+4*tp+3}], v[{XF}:{XF+3}], {c}")
    A("v_and_b32 v14, 0xffff0000, v14")
    A(f"v_add_f32 v14, {fhex(1e-5)}, v14")
    A("v_cvt_pk_bf16_f32 v14, v14, v14")
    A("v_and_b32 v14, 0xffff0000, v14")
    A("v_sqrt_f32 v14, v14")
    A("v_cvt_pk_bf16_f32 v14, v14, v14")
    A("v_and_b32 v14, 0xffff0000, v14")
    A("v_rcp_f32 v15, v14")
    A("v_mul_f32 v14, v14, v14")
    c1 = -2 * 0.7978845608028654 * LOG2E
    A(f"v_mul_f32 v12, {fhex(c1)}, v15")
    A("v_mul_f32 v15, v15, v15")
    A(f"v_mul_f32 v15, {fhex(0.044715)}, v15")
    A("v_mul_f32 v13, v12, v15")
    A("s_mul_i32 s65, s60, 112")
    A("s_lshl_b32 s66, s58, 2")
    A("s_add_u32 s65, s65, s66")
    A("s_lshl_b32 s65, s65, 10")
    A("s_add_u32 s66, s65, s68")
    A("s_xor_b32 s68, s68, 2048")
    A("s_add_u32 s67, s65, s68")
    A("v_lshlrev_b32 v62, 4, v1")
    st = opt.get("hstore", "")
    for tp in range(4):
        g = lambda e: ACC + 16 * tp + e
        u = lambda e: ACC + 16 * tp + 8 + e
        T = 176 + (tp & 1) * 16
        for e in range(8): A(f"v_mul_f32 v{T+e}, v{g(e)}, v{g(e)}")
        for e in range(8): A(f"v_fma_f32 v{T+e}, v{T+e}, v13, v12")
        for e in range(8): A(f"v_mul_f32 v{T+e}, v{T+e}, v{g(e)}")
        for e in range(8):
            A(f"v_exp_f32 v{T+e}, v{T+e}")
            A(f"v_mul_f32 v{g(e)}, v{g(e)}, v{u(e)}")
        for e in range(8): A(f"v_fma_f32 v{T+e}, v{T+e}, v14, v14")
        for e in range(8): A(f"v_rcp_f32 v{T+e}, v{T+e}")
        for e in range(8): A(f"v_mul_f32 v{g(e)}, v{g(e)}, v{T+e}")
        for q in range(4): A(f"v_cvt_pk_bf16_f32 v{T+8+q}, v{g(2*q)}, v{g(2*q+1)}")
        A(f"buffer_store_dwordx4 v[{T+8}:{T+11}], v62, s[52:55], s{66+(tp>>1)} offen offset:{(tp&1)*1024}{st}")
    A("s_branch .LA_fin")
    A(".LA_aux:")
    A("s_waitcnt vmcnt(0)")
    X = 208
    for q in range(32):
        A(f"v_dot2c_f32_bf16 v{12+(q&1)}, s73, v{X+q}")
    A("v_add_f32 v12, v12, v13")
    def red8(r):
        A(f"v_add_f32_dpp v{r}, v{r}, v{r} quad_perm:[1,0,3,2] row_mask:0xf bank_mask:0xf")
        A(f"v_add_f32_dpp v{r}, v{r}, v{r} quad_perm:[2,3,0,1] row_mask:0xf bank_mask:0xf")
        A(f"v_add_f32_dpp v{r}, v{r}, v{r} row_half_mirror row_mask:0xf bank_mask:0xf")
    red8(12)
    A(f"v_mul_f32 v12, {fhex(1/512)}, v12")
    for q in range(32):
        A(f"v_lshlrev_b32 v{64+2*q}, 16, v{X+q}")
        A(f"v_and_b32 v{65+2*q}, 0xffff0000, v{X+q}")
    for q in range(64):
        A(f"v_sub_f32 v{128+(q&7)}, v{64+q}, v12")
        A(f"v_fmac_f32 v{14+(q&1)}, v{128+(q&7)}, v{128+(q&7)}")
    A("v_add_f32 v14, v14, v15")
    red8(14)
    A(f"v_mul_f32 v14, {fhex(1/512)}, v14")
    A("v_cvt_pk_bf16_f32 v12, v12, v12")
    A("v_cvt_pk_bf16_f32 v14, v14, v14")
    A("v_and_b32 v12, 0xffff0000, v12")
    A("v_and_b32 v14, 0xffff0000, v14")
    A(f"v_add_f32 v14, {fhex(1e-5)}, v14")
    A("v_cvt_pk_bf16_f32 v14, v14, v14")
    A("v_and_b32 v14, 0xffff0000, v14")
    A("v_sqrt_f32 v14, v14")
    A("v_cvt_pk_bf16_f32 v14, v14, v14")
    A("v_and_b32 v14, 0xffff0000, v14")
    A("v_rcp_f32 v15, v14")
    A("v_fma_f32 v13, -v14, v15, 1.0")
    A("v_fma_f32 v15, v13, v15, v15")
    RS = 1056
    A("v_lshrrev_b32 v62, 3, v1")
    A("s_lshl_b32 s68, s3, 3")
    A("v_add_u32 v62, s68, v62")
    A(f"v_mul_u32_u24 v62, {RS}, v62")
    A("v_and_b32 v63, 7, v1")
    A("v_lshl_add_u32 v62, v63, 4, v62")
    for q in range(32):
        a0, a1 = 64 + 2 * q, 65 + 2 * q
        A(f"v_sub_f32 v{a0}, v{a0}, v12"); A(f"v_sub_f32 v{a1}, v{a1}, v12")
        A(f"v_cvt_pk_bf16_f32 v{a1}, v{a0}, v{a1}")
        A(f"v_lshlrev_b32 v{a0}, 16, v{a1}"); A(f"v_and_b32 v{a1}, 0xffff0000, v{a1}")
        A(f"v_mul_f32 v{a0}, v{a0}, v15"); A(f"v_mul_f32 v{a1}, v{a1}, v15")
        A(f"v_cvt_pk_bf16_f32 v{X+q}, v{a0}, v{a1}")
        if q & 3 == 3: A(f"ds_write_b128 v62, v[{X+q-3}:{X+q}] offset:{(q>>2)*128}")
    A("s_waitcnt lgkmcnt(0)")
    A("s_barrier")
    A("v_lshrrev_b32 v62, 4, v1")
    A("v_bfe_u32 v63, v1, 2, 2")
    A("v_lshlrev_b32 v63, 2, v63")
    A("v_and_b32 v60, 1, v62")
    A("v_lshl_add_u32 v63, v60, 5, v63")
    A("v_lshrrev_b32 v60, 5, v1")
    A("v_add_u32 v63, v63, v60")
    A(f"v_mul_u32_u24 v63, {RS}, v63")
    A("v_and_b32 v60, 3, v1")
    A("v_lshl_add_u32 v63, v60, 3, v63")
    A("s_lshl_b32 s68, s3, 7")
    A("v_add_u32 v63, s68, v63")
    for db in range(4):
        for th in range(2):
            b = 64 + (db * 2 + th) * 4
            A(f"ds_read_b64_tr_b16 v[{b}:{b+1}], v63 offset:{th*2*RS + db*32}")
            A(f"ds_read_b64_tr_b16 v[{b+2}:{b+3}], v63 offset:{th*2*RS + 16*RS + db*32}")
    A("v_and_b32 v60, 15, v1")
    A("v_lshlrev_b32 v60, 12, v60")
    A("v_lshl_add_u32 v60, v62, 4, v60")
    A("s_lshl_b32 s68, s3, 18")
    A("s_lshl_b32 s69, s65, 7")
    A("s_add_u32 s68, s68, s69")
    A(f"s_add_u32 s68, s68, {XNT_OFF}")
    for db in range(4):
        for th in range(2):
            b = 64 + (db * 2 + th) * 4
            n = db * 2 + th
            A(f"s_waitcnt lgkmcnt({14-2*n})")
            A(f"buffer_store_dwordx4 v[{b}:{b+3}], v60, s[52:55], s68 offen offset:{th*64}")
        A("s_add_u32 s68, s68, 65536")
    A(".LA_fin:")
    if opt.get("stamps"):
        A("s_waitcnt vmcnt(0)")
        stamp(A, opt, 7)
        A("s_memrealtime s[78:79]")
        A("s_waitcnt lgkmcnt(0)")
        for q in range(1, 8): A(f"s_sub_u32 s{80+2*q}, s{80+2*q}, s80")
        A("v_mov_b32 v64, s76"); A("v_mov_b32 v65, s78")
        for q in range(1, 8): A(f"v_mov_b32 v{65+q}, s{80+2*q}")
        A("s_lshl_b32 s68, s2, 3"); A("s_add_u32 s68, s68, s3"); A("s_lshl_b32 s68, s68, 6")
        A(f"s_add_u32 s68, s68, {STAMP_OFF}")
        A("v_mov_b32 v62, 0")
        A("s_mov_b64 exec, 1")
        A("buffer_store_dwordx4 v[64:67], v62, s[52:55], s68 offen")
        A("buffer_store_dwordx4 v[68:71], v62, s[52:55], s68 offen offset:16")
        A("buffer_store_dword v72, v62, s[52:55], s68 offen offset:32")
    A(".LA_end:")
    A("s_endpgm")
    return A.L
```

```python
from fw import *
from ka import H_OFF, XNT_OFF, KR_OFF, YT_OFF, FLAG_OFF, STAMPB_OFF, WS_SIZE

def layout(D):
    RING = max(D * 2048, 16384)
    CB = 4 * RING
    KSZ, USZ, HSZ = 4160, 4608, 4 * 129 * 16
    CH = KSZ + USZ + HSZ
    YS = CB + 2 * CH
    FL = YS + 4 * 2048
    return RING, CB, KSZ, USZ, HSZ, CH, YS, FL, FL + 64
LDS_B = None

def stamp(A, opt, idx):
    if opt.get("stamps"):
        A(f"s_memtime s[{80+2*idx}:{81+2*idx}]")

def gen_kb(opt):
    global LDS_B
    D = opt.get("D", 8)
    RING, CB, KSZ, USZ, HSZ, CH, YS, FL, LDS_B = layout(D)
    hld = opt.get("hld", ""); wld = opt.get("wld", "")
    A = Asm()
    A("s_cmp_ge_u32 s2, 256")
    A("s_cbranch_scc1 .LB_end")
    stamp(A, opt, 0)
    if opt.get("stamps"): A("s_memrealtime s[76:77]")
    A("s_load_dwordx4 s[20:23], s[0:1], 96")
    A("s_load_dwordx2 s[52:53], s[0:1], 120")
    A("s_load_dwordx2 s[40:41], s[0:1], 0")
    A("s_load_dwordx2 s[18:19], s[0:1], 64")
    A("v_lshrrev_b32 v2, 6, v0")
    A("v_and_b32 v1, 63, v0")
    A("v_readfirstlane_b32 s3, v2")
    A("s_and_b32 s6, s2, 7")
    A("s_lshr_b32 s7, s2, 3")
    A("s_lshr_b32 s8, s6, 1")
    A("s_lshl_b32 s8, s8, 3")
    A("s_and_b32 s9, s7, 7")
    A("s_add_u32 s8, s8, s9")
    A("s_and_b32 s9, s6, 1")
    A("s_lshl_b32 s9, s9, 2")
    A("s_lshr_b32 s10, s7, 3")
    A("s_add_u32 s9, s9, s10")
    A(f"s_mov_b32 s54, {WS_SIZE}"); A("s_mov_b32 s55, 0x20000")
    A("v_lshlrev_b32 v2, 4, v1")
    A("s_cmp_ge_u32 s3, 4")
    A("s_cbranch_scc1 .LB_conv")
    ACC = 64; HF = 128; WF = 32
    A(f"v_add_u32 v3, {112*1024}, v2")
    A("v_lshrrev_b32 v8, 3, v1")
    A("v_and_b32 v9, 7, v1")
    A("v_bfe_u32 v10, v1, 4, 1")
    A("v_lshlrev_b32 v10, 2, v10")
    A("v_xor_b32 v9, v9, v10")
    A("v_lshlrev_b32 v9, 4, v9")
    A("v_lshl_add_u32 v4, v8, 10, v9")
    A("v_add_u32 v5, 7168, v4")
    A("s_mul_i32 s11, s3, 28")
    A("s_mul_i32 s12, s8, 224")
    A("s_add_u32 s12, s12, s11")
    A("s_lshl_b32 s12, s12, 10")
    if H_OFF: A(f"s_add_u32 s12, s12, {H_OFF}")
    A("s_lshl_b32 s13, s11, 14")
    A("s_lshl_b32 s14, s9, 7")
    A("s_add_u32 s13, s13, s14")
    A(f"s_mul_i32 s15, s3, {RING}")
    A(f"s_mov_b32 s46, {1792*1024}"); A("s_mov_b32 s47, 0x20000")
    A("v_lshrrev_b32 v8, 5, v1")
    A("v_bfe_u32 v9, v1, 2, 2")
    A("v_lshl_add_u32 v8, v8, 2, v9")
    A("v_lshlrev_b32 v8, 7, v8")
    A("v_bfe_u32 v9, v1, 4, 1")
    A("v_lshl_add_u32 v8, v9, 5, v8")
    A("v_and_b32 v9, 3, v1")
    A("v_lshl_add_u32 v8, v9, 3, v8")
    A("v_bfe_u32 v9, v1, 3, 1")
    A("v_lshl_add_u32 v8, v9, 6, v8")
    A("v_add_u32 v6, s15, v8")
    A("v_xor_b32 v7, 64, v6")
    A("s_waitcnt lgkmcnt(0)")
    A("s_mov_b64 s[44:45], s[20:21]")
    def dmaW(s, part):
        if part == 0:
            A(f"s_add_u32 m0, s15, {(s % D) * 2048}")
            if s: A("s_add_u32 s13, s13, 16384")
            else: A("s_nop 0")
            A(f"buffer_load_dwordx4 v4, s[44:47], s13 offen lds{wld}")
        else:
            A(f"buffer_load_dwordx4 v5, s[44:47], s13 offen offset:1024 lds{wld}")
    def ldH(s, th):
        if th == 0 and s and s % 4 == 0: A("s_add_u32 s12, s12, 4096")
        b = HF + (s % D) * 8 + th * 4
        A(f"buffer_load_dwordx4 v[{b}:{b+3}], v{2+th}, s[52:55], s12 offen offset:{(s % 4) * 1024}{hld}")
    for s in range(D):
        dmaW(s, 0); dmaW(s, 1); ldH(s, 0); ldH(s, 1)
        if s == opt.get("barpos", D - 1): A("s_barrier")
    stamp(A, opt, 1)
    def trW(s):
        b = WF + (s & 1) * 8
        o = (s % D) * 2048
        for cb in range(2):
            A(f"ds_read_b64_tr_b16 v[{b+4*cb}:{b+4*cb+1}], v{6+cb} offset:{o}")
            A(f"ds_read_b64_tr_b16 v[{b+4*cb+2}:{b+4*cb+3}], v{6+cb} offset:{o+1024}")
    A(f"s_waitcnt vmcnt({4*(D-1)})")
    stamp(A, opt, 2)
    trW(0)
    NS = 28
    for s in range(NS):
        last = min(s - 1 + D, NS - 1)
        if s + 1 < NS:
            A(f"s_waitcnt vmcnt({4*(last-(s+1))})")
            trW(s + 1)
            A("s_waitcnt lgkmcnt(4)")
        else:
            A("s_waitcnt lgkmcnt(0)")
        if s == 14: stamp(A, opt, 3)
        nx = s + D < NS
        def M(cb, th):
            c = f"v[{ACC+16*(2*th+cb)}:{ACC+16*(2*th+cb)+15}]"
            a = WF + (s & 1) * 8 + 4 * cb; b = HF + (s % D) * 8 + th * 4
            A(f"v_mfma_f32_32x32x16_bf16 {c}, v[{a}:{a+3}], v[{b}:{b+3}], {'0' if s == 0 else c}")
        M(0, 0)
        if nx: dmaW(s + D, 0)
        M(1, 0)
        if nx: dmaW(s + D, 1); ldH(s + D, 0)
        M(0, 1)
        M(1, 1)
        if nx: ldH(s + D, 1)
    stamp(A, opt, 4)
    A("v_lshrrev_b32 v8, 5, v1")
    A("v_lshlrev_b32 v8, 10, v8")
    A("v_and_b32 v9, 31, v1")
    A("v_lshl_add_u32 v8, v9, 4, v8")
    A("v_add_u32 v8, s15, v8")
    for th in range(2):
        for cb in range(2):
            for rq in range(4):
                b = ACC + 16 * (2 * th + cb) + 4 * rq
                A(f"ds_write_b128 v8, v[{b}:{b+3}] offset:{(cb*8+2*rq)*1024 + th*512}")
    A("s_waitcnt lgkmcnt(0)")
    stamp(A, opt, 5)
    A("s_barrier")
    A("s_branch .LB_fin")
    A(".LB_conv:")
    if opt.get("prio", 2): A(f"s_setprio {opt.get('prio', 2)}")
    A("s_sub_u32 s3, s3, 4")
    A("s_lshr_b32 s10, s3, 1")
    A("s_and_b32 s11, s3, 1")
    A("s_lshl_b32 s12, s2, 1")
    A("s_add_u32 s12, s12, s10")
    A("s_lshl_b32 s12, s12, 12")
    A(f"s_mul_i32 s13, s10, {CH}")
    A(f"s_add_u32 s13, s13, {CB}")
    A(f"s_mul_i32 s14, s11, {KSZ + 512 - 64}")
    A("s_add_u32 s14, s14, s13")
    A("s_add_u32 m0, s14, 64")
    A(f"s_mul_i32 s15, s11, {XNT_OFF - KR_OFF}")
    A(f"s_add_u32 s15, s15, {KR_OFF}")
    A("s_add_u32 s15, s15, s12")
    A("s_waitcnt lgkmcnt(0)")
    for q in range(4):
        A(f"buffer_load_dwordx4 v2, s[52:55], s15 offen offset:{q*1024} lds")
    A("s_lshl_b32 s16, s2, 2")
    A("s_load_dword s17, s[18:19], s16")
    A("s_mov_b32 s42, 0x200000"); A("s_mov_b32 s43, 0x20000")
    A("s_mov_b64 s[48:49], s[22:23]"); A("s_mov_b32 s50, 0x200000"); A("s_mov_b32 s51, 0x20000")
    A("v_and_b32 v8, 15, v1")
    A("v_lshrrev_b32 v9, 4, v1")
    A("v_lshlrev_b32 v3, 10, v8")
    A("v_lshl_add_u32 v3, v9, 4, v3")
    A("s_lshl_b32 s24, s8, 2")
    A("s_add_u32 s24, s24, s3")
    A("s_lshl_b32 s24, s24, 14")
    A("s_lshl_b32 s25, s9, 7")
    A("s_add_u32 s24, s24, s25")
    XR = 24
    A(f"buffer_load_dwordx4 v[{XR}:{XR+3}], v3, s[40:43], s24 offen")
    A(f"buffer_load_dwordx4 v[{XR+4}:{XR+7}], v3, s[40:43], s24 offen offset:64")
    for r in range(12, 16): A(f"v_mov_b32 v{r}, 0")
    A(f"v_add_u32 v10, {KSZ}, v2")
    A("v_subrev_u32 v11, 512, v2")
    A("v_cmp_gt_u32 vcc, 32, v1")
    A("v_cndmask_b32 v10, v11, v10, vcc")
    A("v_subrev_u32 v11, 36, v1")
    A(f"v_mul_u32_u24 v11, {129*16}, v11")
    A(f"v_add_u32 v11, {KSZ+USZ}, v11")
    A("v_cmp_gt_u32 vcc, 36, v1")
    A("v_cndmask_b32 v10, v11, v10, vcc")
    A("v_add_u32 v10, s13, v10")
    A("v_and_b32 v11, 1, v1")
    A("v_lshlrev_b32 v11, 4, v11")
    A(f"v_add_u32 v11, {FL}, v11")
    A("v_cmp_gt_u32 vcc, 40, v1")
    A("v_cndmask_b32 v10, v11, v10, vcc")
    A("ds_write_b128 v10, v[12:15]")
    A("v_lshrrev_b32 v10, 5, v1")
    A("v_lshlrev_b32 v4, 6, v10")
    A("v_and_b32 v11, 1, v1")
    A("v_lshl_add_u32 v4, v11, 5, v4")
    A("v_bfe_u32 v11, v1, 4, 1")
    A("v_lshl_add_u32 v4, v11, 4, v4")
    A("v_bfe_u32 v12, v1, 1, 1")
    A("v_lshl_add_u32 v4, v12, 3, v4")
    A("v_bfe_u32 v12, v1, 2, 2")
    A("v_lshlrev_b32 v13, 3, v12")
    A("v_sub_u32 v4, v4, v13")
    A("s_add_u32 s14, s13, 32")
    A("v_add_u32 v4, s14, v4")
    A("v_and_b32 v13, 3, v1")
    A("v_lshl_add_u32 v13, v11, 2, v13")
    A("v_sub_u32 v14, v13, v10")
    A("v_add_u32 v14, 2, v14")
    A("v_lshrrev_b32 v15, 1, v14")
    A("v_lshlrev_b32 v5, 7, v15")
    A("v_and_b32 v14, 1, v14")
    A("v_lshl_add_u32 v5, v14, 4, v5")
    A("v_lshl_add_u32 v5, v12, 5, v5")
    A(f"s_add_u32 s14, s13, {KSZ}")
    A("v_add_u32 v5, s14, v5")
    A("v_mul_u32_u24 v6, 129, v12")
    A("v_lshl_add_u32 v6, v13, 1, v6")
    A("v_add_u32 v6, v6, v10")
    A(f"s_add_u32 s14, s13, {KSZ+USZ}")
    A("v_lshl_add_u32 v6, v6, 4, s14")
    A("v_and_b32 v14, 1, v12")
    A("v_mul_u32_u24 v14, 3, v14")
    A("v_xor_b32 v14, s11, v14")
    A("v_lshrrev_b32 v15, 1, v12")
    A("v_lshlrev_b32 v7, 9, v14")
    A("v_lshrrev_b32 v16, 1, v13")
    A("v_lshl_add_u32 v7, v16, 7, v7")
    A("v_and_b32 v16, 1, v13")
    A("v_lshl_add_u32 v7, v16, 4, v7")
    A("v_lshl_add_u32 v7, v10, 3, v7")
    A("v_lshl_add_u32 v7, v15, 2, v7")
    A(f"s_add_u32 s14, s13, {KSZ+512}")
    A("v_add_u32 v7, s14, v7")
    A("v_lshlrev_b32 v16, 9, v14")
    A("v_lshl_add_u32 v16, v13, 6, v16")
    A("v_lshl_add_u32 v16, v10, 5, v16")
    A("v_lshl_add_u32 v16, v15, 4, v16")
    A(f"s_add_u32 s12, s12, {YT_OFF}")
    stamp(A, opt, 1)
    A("s_waitcnt vmcnt(2) lgkmcnt(0)")
    A("s_barrier")
    stamp(A, opt, 2)
    ZA = 64; FR = 128
    U = 32
    def Freg(st, q): return FR + st * 64 + q * 4
    def Greg(st, d): return FR + st * 64 + 32 + d * 4
    def ldF(w, q):
        b = Freg(w & 1, q); pp = 4 * q + w
        return [f"ds_read_b64_tr_b16 v[{b}:{b+1}], v4 offset:{128*pp+32}", f"ds_read_b64_tr_b16 v[{b+2}:{b+3}], v4 offset:{128*pp}"]
    def ldG(w, d):
        b = Greg(w & 1, d)
        return [f"ds_read_b128 v[{b}:{b+3}], v5 offset:{512*d+128*(3-w)}"]
    A("s_cmp_eq_u32 s11, 0")
    A("s_cbranch_scc0 .LB_t1")
    for ty in range(2):
        if ty: A(".LB_t1:")
        tiles = [0, 3, 4, 7] if ty == 0 else [1, 2, 5, 6]
        nf = tiles[-1] + 1
        prs = [(q, at - q, ti) for ti, at in enumerate(tiles) for q in range(at + 1)]
        prs.sort(key=lambda x: (max(x[0], x[1]), x[2]))
        seq = []; rem = prs[:]
        while rem:
            k = 0
            if seq and rem[0][2] == seq[-1][2]:
                for kk in range(1, min(4, len(rem))):
                    if rem[kk][2] != seq[-1][2]: k = kk; break
            seq.append(rem.pop(k))
        def loads(w):
            L = []
            for i in range(nf): L.append((("F", i), ldF(w, i))); L.append((("G", i), ldG(w, i)))
            return L
        first = {}
        for w in range(4):
            if w == 0:
                L = loads(0); flat = []; pos = {}
                for key, ins in L:
                    flat += ins; pos[key] = len(flat)
                issued = 0
                def pump(upto):
                    nonlocal issued
                    while issued < min(upto, len(flat)): A(flat[issued]); issued += 1
                nxt = sum((ins for _, ins in loads(1)), [])
                flat_all = flat + nxt
                flat = flat_all
                pump(12)
            else:
                A("s_waitcnt lgkmcnt(0)")
                flat = sum((ins for _, ins in loads(w + 1)), []) if w < 3 else \
                    [f"ds_read_b32 v{U+4*p+b}, v7 offset:{2048*p+32*b}" for p in range(2) for b in range(4)]
                issued = 0
            waited = 0
            for n, (q, d, ti) in enumerate(seq):
                if w == 0:
                    need_ = max(pos[("F", q)], pos[("G", d)])
                    if need_ > waited:
                        pump(need_)
                        A(f"s_waitcnt lgkmcnt({min(15, issued - need_)})"); waited = need_
                c = f"v[{ZA+16*ti}:{ZA+16*ti+15}]"
                a = Freg(w & 1, q); b = Greg(w & 1, d)
                A(f"v_mfma_f32_32x32x16_bf16 {c}, v[{a}:{a+3}], v[{b}:{b+3}], {c if ti in first else '0'}")
                first[ti] = 1
                pump(issued + (3 if w == 0 else 2))
            pump(len(flat))
        for ti in range(4):
            A(f"ds_write_b128 v6, v[{ZA+16*ti+12}:{ZA+16*ti+15}] offset:{256*tiles[ti]+16}")
        A("v_mov_b32 v8, 1")
        A("s_lshl_b32 s14, s3, 2")
        A(f"s_add_u32 s14, s14, {FL}")
        A("v_mov_b32 v9, s14")
        A("v_xor_b32 v10, 4, v9")
        A("s_waitcnt lgkmcnt(0)")
        A("ds_write_b32 v9, v8")
        A("s_mov_b32 s28, 0x100000")
        A(f".LB_hw{ty}:")
        A("ds_read_b32 v11, v10")
        A("s_sub_u32 s28, s28, 1")
        A(f"s_cbranch_scc1 .LB_hx{ty}")
        A("s_waitcnt lgkmcnt(0)")
        A("v_readfirstlane_b32 s14, v11")
        A("s_cmp_eq_u32 s14, 0")
        A(f"s_cbranch_scc1 .LB_hw{ty}")
        A(f".LB_hx{ty}:")
        HR = 128
        for ti in range(4):
            A(f"ds_read_b128 v[{HR+4*ti}:{HR+4*ti+3}], v6 offset:{256*tiles[ti]}")
        if ty == 0: A("s_branch .LB_tdone")
    A(".LB_tdone:")
    stamp(A, opt, 3)
    HR = 128; S = 144; O = 192
    def z(ti, i): return HR + 4 * ti + 4 + i if i < 0 else ZA + 16 * ti + i
    for ti in range(4):
        for i in range(9):
            A(f"v_add_f32_dpp v{S+12*ti+i}, v{z(ti,i+7)}, v{z(ti,i+5)} row_ror:8 row_mask:0xf bank_mask:0xc")
    for ti in range(4):
        for i in range(3, 9):
            A(f"v_add_f32_dpp v{S+12*ti+i}, v{z(ti,i-3)}, v{z(ti,i-1)} row_ror:8 row_mask:0xf bank_mask:0x3")
    A("s_waitcnt lgkmcnt(0)")
    for ti in range(4):
        for i in range(3):
            A(f"v_add_f32_dpp v{S+12*ti+i}, v{z(ti,i-3)}, v{z(ti,i-1)} row_ror:8 row_mask:0xf bank_mask:0x3")
    A("s_lshl_b32 s14, s17, 16")
    A("s_and_b32 s15, s17, 0xffff0000")
    A("s_cmp_eq_u32 s10, 0")
    A("s_cselect_b32 s14, s14, s15")
    for p in range(2):
        a_, b_ = S + 12 * (2 * p), S + 12 * (2 * p + 1)
        for k in range(8):
            A(f"v_add_f32_dpp v{O+8*p+k}, v{a_+k}, v{a_+k+1} row_shl:4 row_mask:0xf bank_mask:0x5")
        for k in range(8):
            A(f"v_add_f32_dpp v{O+8*p+k}, v{b_+k+1}, v{b_+k} row_shr:4 row_mask:0xf bank_mask:0xa")
    T = 64
    for p in range(2):
        for b in range(4):
            A(f"v_lshlrev_b32 v{T+8*p+b}, 16, v{U+4*p+b}")
            A(f"v_and_b32 v{T+8*p+b+4}, 0xffff0000, v{U+4*p+b}")
        if opt.get("mimic", 1):
            for k in range(8): A(f"v_mul_f32 v{T+8*p+k}, s14, v{T+8*p+k}")
            for k in range(0, 8, 2):
                A(f"v_cvt_pk_bf16_f32 v{T+8*p+k+1}, v{T+8*p+k}, v{T+8*p+k+1}")
                A(f"v_cvt_pk_bf16_f32 v{O+8*p+k+1}, v{O+8*p+k}, v{O+8*p+k+1}")
            for k in range(0, 8, 2):
                for R in (T, O):
                    A(f"v_lshlrev_b32 v{R+8*p+k}, 16, v{R+8*p+k+1}")
                    A(f"v_and_b32 v{R+8*p+k+1}, 0xffff0000, v{R+8*p+k+1}")
            for k in range(8): A(f"v_add_f32 v{O+8*p+k}, v{O+8*p+k}, v{T+8*p+k}")
        else:
            for k in range(8): A(f"v_fmac_f32 v{O+8*p+k}, s14, v{T+8*p+k}")
        for k in range(4): A(f"v_cvt_pk_bf16_f32 v{80+4*p+k}, v{O+8*p+2*k}, v{O+8*p+2*k+1}")
        A(f"buffer_store_dwordx4 v[{80+4*p}:{83+4*p}], v16, s[52:55], s12 offen offset:{2048*p} sc1")
    A("s_setprio 0")
    A("v_and_b32 v8, 31, v1")
    A("v_lshlrev_b32 v8, 2, v8")
    A("s_lshl_b32 s14, s9, 7")
    A(f"s_add_u32 s14, s14, {FLAG_OFF}")
    A("v_lshrrev_b32 v9, 1, v1")
    A("v_lshlrev_b32 v9, 12, v9")
    A("v_and_b32 v10, 1, v1")
    A("v_lshl_add_u32 v9, v10, 4, v9")
    A("v_add_u32 v10, 0x20000, v9")
    A("s_lshl_b32 s15, s9, 18")
    A("s_lshl_b32 s26, s8, 7")
    A("s_add_u32 s15, s15, s26")
    A("s_lshl_b32 s26, s3, 5")
    A("s_add_u32 s15, s15, s26")
    A(f"s_add_u32 s15, s15, {YT_OFF}")
    A(f"v_mov_b32 v11, {FL+16}")
    A("v_mov_b32 v12, 1")
    A("s_waitcnt vmcnt(0)")
    stamp(A, opt, 4)
    A("s_mov_b64 exec, 1")
    A("ds_add_rtn_u32 v13, v11, v12")
    A("s_waitcnt lgkmcnt(0)")
    A("v_readfirstlane_b32 s26, v13")
    A("s_cmp_lg_u32 s26, 3")
    A("s_cbranch_scc1 .LB_nosig")
    A(f"s_add_u32 s26, s16, {FLAG_OFF}")
    A("v_mov_b32 v13, 0")
    A("buffer_store_dword v12, v13, s[52:55], s26 offen sc1")
    A(".LB_nosig:")
    A("s_mov_b64 exec, -1")
    A("s_mov_b32 s28, 0x40000")
    A(".LB_poll:")
    A("buffer_load_dword v13, v8, s[52:55], s14 offen sc1")
    A("s_sub_u32 s28, s28, 1")
    A("s_cbranch_scc1 .LB_got")
    A("s_waitcnt vmcnt(0)")
    A("v_cmp_ne_u32 vcc, 1, v13")
    A("s_cbranch_vccz .LB_got")
    A(f"s_sleep {opt.get('psleep', 4)}")
    A("s_branch .LB_poll")
    A(".LB_got:")
    A("buffer_load_dwordx4 v[64:67], v9, s[52:55], s15 offen sc1")
    A("buffer_load_dwordx4 v[68:71], v10, s[52:55], s15 offen sc1")
    stamp(A, opt, 5)
    A("s_lshl_b32 s26, s3, 11")
    A(f"s_add_u32 s26, s26, {YS}")
    A("v_add_u32 v11, s26, v2")
    A("v_lshrrev_b32 v12, 4, v1")
    A("v_lshlrev_b32 v12, 8, v12")
    A("v_and_b32 v13, 15, v1")
    A("v_lshl_add_u32 v12, v13, 3, v12")
    A("v_add_u32 v12, s26, v12")
    A("v_lshrrev_b32 v14, 4, v1")
    A("v_lshlrev_b32 v14, 11, v14")
    A("v_lshl_add_u32 v14, v13, 4, v14")
    A("s_lshl_b32 s27, s3, 8")
    A("v_add_u32 v14, s27, v14")
    R = 96
    for q in range(8):
        A(f"v_lshlrev_b32 v{R+2*q}, 16, v{XR+q}")
        A(f"v_and_b32 v{R+2*q+1}, 0xffff0000, v{XR+q}")
    A("s_waitcnt vmcnt(0)")
    A("ds_write_b128 v11, v[64:67]")
    A("ds_write_b128 v11, v[68:71] offset:1024")
    A("s_waitcnt lgkmcnt(0)")
    for hf in range(2):
        for n in range(2):
            A(f"ds_read_b64_tr_b16 v[{72+4*hf+2*n}:{73+4*hf+2*n}], v12 offset:{hf*1024+n*128}")
    A("s_waitcnt lgkmcnt(0)")
    for q in range(8):
        A(f"v_lshlrev_b32 v{80+2*(q&3)}, 16, v{72+q}")
        A(f"v_and_b32 v{81+2*(q&3)}, 0xffff0000, v{72+q}")
        A(f"v_add_f32 v{R+2*q}, v{R+2*q}, v{80+2*(q&3)}")
        A(f"v_add_f32 v{R+2*q+1}, v{R+2*q+1}, v{81+2*(q&3)}")
        A(f"v_cvt_pk_bf16_f32 v{R+2*q+1}, v{R+2*q}, v{R+2*q+1}")
    for q in range(8):
        A(f"v_lshlrev_b32 v{R+2*q}, 16, v{R+2*q+1}")
        A(f"v_and_b32 v{R+2*q+1}, 0xffff0000, v{R+2*q+1}")
    stamp(A, opt, 6)
    A("s_barrier")
    P = 128
    assert 3 * RING + 9216 + 1024 < 65536
    for hf in range(2):
        for j in range(2):
            for q in range(4):
                b = P + (hf * 2 + j) * 16 + q * 4
                A(f"ds_read_b128 v[{b}:{b+3}], v14 offset:{q*RING + hf*8192 + j*1024}")
    for hf in range(2):
        for j in range(2):
            n = hf * 2 + j; b = P + n * 16
            A(f"s_waitcnt lgkmcnt({12-4*n})")
            for e in range(0, 4, 2):
                A(f"v_pk_add_f32 v[{b+e}:{b+e+1}], v[{b+e}:{b+e+1}], v[{b+4+e}:{b+5+e}]")
                A(f"v_pk_add_f32 v[{b+8+e}:{b+9+e}], v[{b+8+e}:{b+9+e}], v[{b+12+e}:{b+13+e}]")
            for e in range(0, 4, 2):
                A(f"v_pk_add_f32 v[{b+e}:{b+e+1}], v[{b+e}:{b+e+1}], v[{b+8+e}:{b+9+e}]")
            for e in range(0, 4, 2):
                A(f"v_cvt_pk_bf16_f32 v{b+e+1}, v{b+e}, v{b+e+1}")
            for e in range(0, 4, 2):
                A(f"v_lshlrev_b32 v{b+e}, 16, v{b+e+1}")
                A(f"v_and_b32 v{b+e+1}, 0xffff0000, v{b+e+1}")
            for e in range(0, 4, 2):
                r = R + 4 * n + e
                A(f"v_pk_add_f32 v[{b+e}:{b+e+1}], v[{b+e}:{b+e+1}], v[{r}:{r+1}]")
            for e in range(0, 4, 2):
                A(f"v_cvt_pk_bf16_f32 v{64+2*n+e//2}, v{b+e}, v{b+e+1}")
        A(f"buffer_store_dwordx4 v[{64+4*hf}:{67+4*hf}], v3, s[48:51], s24 offen offset:{64*hf}")
    A("s_add_u32 s3, s3, 4")
    A(".LB_fin:")
    if opt.get("stamps"):
        A("s_waitcnt vmcnt(0)")
        stamp(A, opt, 7)
        A("s_memrealtime s[78:79]")
        A("s_waitcnt lgkmcnt(0)")
        for q in range(1, 8): A(f"s_sub_u32 s{80+2*q}, s{80+2*q}, s80")
        A("v_mov_b32 v64, s76"); A("v_mov_b32 v65, s78")
        for q in range(1, 8): A(f"v_mov_b32 v{65+q}, s{80+2*q}")
        A("s_lshl_b32 s68, s2, 3"); A("s_add_u32 s68, s68, s3"); A("s_lshl_b32 s68, s68, 6")
        A(f"s_add_u32 s68, s68, {STAMPB_OFF}")
        A("v_mov_b32 v62, 0")
        A("s_mov_b64 exec, 1")
        A("buffer_store_dwordx4 v[64:67], v62, s[52:55], s68 offen")
        A("buffer_store_dwordx4 v[68:71], v62, s[52:55], s68 offen offset:16")
        A("buffer_store_dword v72, v62, s[52:55], s68 offen offset:32")
    A(".LB_end:")
    A("s_endpgm")
    return A.L
```

```python
import sys, json
from fw import *
import ka
P = "parallel_sum__ssm_conv_s4__geglu_ffn__prompt"
def build(opt, fn):
    ks = []
    la, na = fix_hazards(ka.gen_ka(opt), opt.get("verbose"))
    ks.append(("ka_kernel", la, 256, 256, 163840))
    if not opt.get("onlyA"):
        import kb
        lb, nb = fix_hazards(kb.gen_kb(opt), opt.get("verbose"))
        ks.append(("kb_kernel", lb, 256, 256, kb.LDS_B))
    if opt.get("empty"): ks.append(("ke_kernel", ["s_endpgm"], 256, 256, 0))
    hdr = open("cdna_kernels/" + P + ".s.ref").read().split("; Override launch")[0]
    s = hdr
    for n, l, v, a, lds in ks: s += f"; @launch kernel={n} grid=(256,1,1) block=(512,1,1) lds={lds}\n"
    s += '.amdgcn_target "amdgcn-amd-amdhsa--gfx950"\n'
    for n, l, v, a, lds in ks: s += kernel_text(n, l, v, a)
    s += "CODE_END:\n    s_endpgm\n"
    for n, l, v, a, lds in ks: s += kernel_desc(n, v, a)
    open(fn, "w").write(s)
if __name__ == "__main__":
    opt = json.loads(sys.argv[2]) if len(sys.argv) > 2 else {}
    build(opt, sys.argv[1])
```

```python
from fw import *
from ka import H_OFF, XNT_OFF, KR_OFF, YT_OFF, FLAG_OFF, STAMPB_OFF, WS_SIZE

def layout(D):
    RING = max(D * 2048, 16384)
    CB = 4 * RING
    KSZ, USZ, HSZ = 4160, 4608, 4 * 129 * 16
    CH = KSZ + USZ + HSZ
    YS = CB + 2 * CH
    FL = YS + 4 * 2048
    return RING, CB, KSZ, USZ, HSZ, CH, YS, FL, FL + 64
LDS_B = None

def stamp(A, opt, idx):
    if opt.get("stamps"):
        A(f"s_memtime s[{80+2*idx}:{81+2*idx}]")

def gen_kb(opt):
    global LDS_B
    D = opt.get("D", 8)
    RING, CB, KSZ, USZ, HSZ, CH, YS, FL, LDS_B = layout(D)
    hld = opt.get("hld", ""); wld = opt.get("wld", "")
    A = Asm()
    A("s_cmp_ge_u32 s2, 256")
    A("s_cbranch_scc1 .LB_end")
    stamp(A, opt, 0)
    if opt.get("stamps"): A("s_memrealtime s[76:77]")
    A("s_load_dwordx4 s[20:23], s[0:1], 96")
    A("s_load_dwordx2 s[52:53], s[0:1], 120")
    A("s_load_dwordx2 s[40:41], s[0:1], 0")
    A("s_load_dwordx2 s[18:19], s[0:1], 64")
    A("v_lshrrev_b32 v2, 6, v0")
    A("v_and_b32 v1, 63, v0")
    A("v_readfirstlane_b32 s3, v2")
    A("s_and_b32 s6, s2, 7")
    A("s_lshr_b32 s7, s2, 3")
    A("s_lshr_b32 s8, s6, 1")
    A("s_lshl_b32 s8, s8, 3")
    A("s_and_b32 s9, s7, 7")
    A("s_add_u32 s8, s8, s9")
    A("s_and_b32 s9, s6, 1")
    A("s_lshl_b32 s9, s9, 2")
    A("s_lshr_b32 s10, s7, 3")
    A("s_add_u32 s9, s9, s10")
    A(f"s_mov_b32 s54, {WS_SIZE}"); A("s_mov_b32 s55, 0x20000")
    A("v_lshlrev_b32 v2, 4, v1")
    A("s_cmp_ge_u32 s3, 4")
    A("s_cbranch_scc1 .LB_conv")
    ACC = 64; HF = 128; WF = 32
    A(f"v_add_u32 v3, {112*1024}, v2")
    A("v_lshrrev_b32 v8, 3, v1")
    A("v_and_b32 v9, 7, v1")
    A("v_bfe_u32 v10, v1, 4, 1")
    A("v_lshlrev_b32 v10, 2, v10")
    A("v_xor_b32 v9, v9, v10")
    A("v_lshlrev_b32 v9, 4, v9")
    A("v_lshl_add_u32 v4, v8, 10, v9")
    A("v_add_u32 v5, 7168, v4")
    A("s_mul_i32 s11, s3, 28")
    A("s_mul_i32 s12, s8, 224")
    A("s_add_u32 s12, s12, s11")
    A("s_lshl_b32 s12, s12, 10")
    if H_OFF: A(f"s_add_u32 s12, s12, {H_OFF}")
    A("s_lshl_b32 s13, s11, 14")
    A("s_lshl_b32 s14, s9, 7")
    A("s_add_u32 s13, s13, s14")
    A(f"s_mul_i32 s15, s3, {RING}")
    A(f"s_mov_b32 s46, {1792*1024}"); A("s_mov_b32 s47, 0x20000")
    A("v_lshrrev_b32 v8, 5, v1")
    A("v_bfe_u32 v9, v1, 2, 2")
    A("v_lshl_add_u32 v8, v8, 2, v9")
    A("v_lshlrev_b32 v8, 7, v8")
    A("v_bfe_u32 v9, v1, 4, 1")
    A("v_lshl_add_u32 v8, v9, 5, v8")
    A("v_and_b32 v9, 3, v1")
    A("v_lshl_add_u32 v8, v9, 3, v8")
    A("v_bfe_u32 v9, v1, 3, 1")
    A("v_lshl_add_u32 v8, v9, 6, v8")
    A("v_add_u32 v6, s15, v8")
    A("v_xor_b32 v7, 64, v6")
    A("s_waitcnt lgkmcnt(0)")
    A("s_mov_b64 s[44:45], s[20:21]")
    def dmaW(s, part):
        if part == 0:
            A(f"s_add_u32 m0, s15, {(s % D) * 2048}")
            if s: A("s_add_u32 s13, s13, 16384")
            else: A("s_nop 0")
            if opt.get("noW"): return
            A(f"buffer_load_dwordx4 v4, s[44:47], s13 offen lds{wld}")
        else:
            if opt.get("noW"): return
            A(f"buffer_load_dwordx4 v5, s[44:47], s13 offen offset:1024 lds{wld}")
    def ldH(s, th):
        if th == 0 and s and s % 4 == 0: A("s_add_u32 s12, s12, 4096")
        b = HF + (s % D) * 8 + th * 4
        if opt.get("noH"): return
        A(f"buffer_load_dwordx4 v[{b}:{b+3}], v{2+th}, s[52:55], s12 offen offset:{(s % 4) * 1024}{hld}")
    for s in range(D):
        dmaW(s, 0); dmaW(s, 1); ldH(s, 0); ldH(s, 1)
        if s == opt.get("barpos", D - 1): A("s_barrier")
    stamp(A, opt, 1)
    def trW(s):
        b = WF + (s & 1) * 8
        o = (s % D) * 2048
        for cb in range(2):
            A(f"ds_read_b64_tr_b16 v[{b+4*cb}:{b+4*cb+1}], v{6+cb} offset:{o}")
            A(f"ds_read_b64_tr_b16 v[{b+4*cb+2}:{b+4*cb+3}], v{6+cb} offset:{o+1024}")
    NV = 2 if (opt.get("noW") or opt.get("noH")) else 4
    A(f"s_waitcnt vmcnt({NV*(D-1)})")
    stamp(A, opt, 2)
    trW(0)
    NS = 28
    for s in range(NS):
        last = min(s - 1 + D, NS - 1)
        if s + 1 < NS:
            A(f"s_waitcnt vmcnt({NV*(last-(s+1))})")
            trW(s + 1)
            A("s_waitcnt lgkmcnt(4)")
        else:
            A("s_waitcnt lgkmcnt(0)")
        if s == 14: stamp(A, opt, 3)
        nx = s + D < NS
        def M(cb, th):
            c = f"v[{ACC+16*(2*th+cb)}:{ACC+16*(2*th+cb)+15}]"
            a = WF + (s & 1) * 8 + 4 * cb; b = HF + (s % D) * 8 + th * 4
            A(f"v_mfma_f32_32x32x16_bf16 {c}, v[{a}:{a+3}], v[{b}:{b+3}], {'0' if s == 0 else c}")
        M(0, 0)
        if nx: dmaW(s + D, 0)
        M(1, 0)
        if nx: dmaW(s + D, 1); ldH(s + D, 0)
        M(0, 1)
        M(1, 1)
        if nx: ldH(s + D, 1)
    stamp(A, opt, 4)
    A("v_lshrrev_b32 v8, 5, v1")
    A("v_lshlrev_b32 v8, 10, v8")
    A("v_and_b32 v9, 31, v1")
    A("v_lshl_add_u32 v8, v9, 4, v8")
    A("v_add_u32 v8, s15, v8")
    for th in range(2):
        for cb in range(2):
            for rq in range(4):
                b = ACC + 16 * (2 * th + cb) + 4 * rq
                A(f"ds_write_b128 v8, v[{b}:{b+3}] offset:{(cb*8+2*rq)*1024 + th*512}")
    A("s_waitcnt lgkmcnt(0)")
    stamp(A, opt, 5)
    A("s_barrier")
    A("s_branch .LB_fin")
    A(".LB_conv:")
    if opt.get("noconv"):
        A("s_waitcnt lgkmcnt(0)"); A("s_barrier"); A("s_barrier"); A("s_branch .LB_fin")
    if opt.get("prio", 2): A(f"s_setprio {opt.get('prio', 2)}")
    A("s_sub_u32 s3, s3, 4")
    A("s_lshr_b32 s10, s3, 1")
    A("s_and_b32 s11, s3, 1")
    A("s_lshl_b32 s12, s2, 1")
    A("s_add_u32 s12, s12, s10")
    A("s_lshl_b32 s12, s12, 12")
    A(f"s_mul_i32 s13, s10, {CH}")
    A(f"s_add_u32 s13, s13, {CB}")
    A(f"s_mul_i32 s14, s11, {KSZ + 512 - 64}")
    A("s_add_u32 s14, s14, s13")
    A("s_add_u32 m0, s14, 64")
    A(f"s_mul_i32 s15, s11, {XNT_OFF - KR_OFF}")
    A(f"s_add_u32 s15, s15, {KR_OFF}")
    A("s_add_u32 s15, s15, s12")
    A("s_waitcnt lgkmcnt(0)")
    for q in range(4):
        A(f"buffer_load_dwordx4 v2, s[52:55], s15 offen offset:{q*1024} lds")
    A("s_lshl_b32 s16, s2, 2")
    A("s_load_dword s17, s[18:19], s16")
    A("s_mov_b32 s42, 0x200000"); A("s_mov_b32 s43, 0x20000")
    A("s_mov_b64 s[48:49], s[22:23]"); A("s_mov_b32 s50, 0x200000"); A("s_mov_b32 s51, 0x20000")
    A("v_and_b32 v8, 15, v1")
    A("v_lshrrev_b32 v9, 4, v1")
    A("v_lshlrev_b32 v3, 10, v8")
    A("v_lshl_add_u32 v3, v9, 4, v3")
    A("s_lshl_b32 s24, s8, 2")
    A("s_add_u32 s24, s24, s3")
    A("s_lshl_b32 s24, s24, 14")
    A("s_lshl_b32 s25, s9, 7")
    A("s_add_u32 s24, s24, s25")
    XR = 24
    A(f"buffer_load_dwordx4 v[{XR}:{XR+3}], v3, s[40:43], s24 offen")
    A(f"buffer_load_dwordx4 v[{XR+4}:{XR+7}], v3, s[40:43], s24 offen offset:64")
    for r in range(12, 16): A(f"v_mov_b32 v{r}, 0")
    A(f"v_add_u32 v10, {KSZ}, v2")
    A("v_subrev_u32 v11, 512, v2")
    A("v_cmp_gt_u32 vcc, 32, v1")
    A("v_cndmask_b32 v10, v11, v10, vcc")
    A("v_subrev_u32 v11, 36, v1")
    A(f"v_mul_u32_u24 v11, {129*16}, v11")
    A(f"v_add_u32 v11, {KSZ+USZ}, v11")
    A("v_cmp_gt_u32 vcc, 36, v1")
    A("v_cndmask_b32 v10, v11, v10, vcc")
    A("v_add_u32 v10, s13, v10")
    A("v_and_b32 v11, 1, v1")
    A("v_lshlrev_b32 v11, 4, v11")
    A(f"v_add_u32 v11, {FL}, v11")
    A("v_cmp_gt_u32 vcc, 40, v1")
    A("v_cndmask_b32 v10, v11, v10, vcc")
    A("ds_write_b128 v10, v[12:15]")
    A("v_lshrrev_b32 v10, 5, v1")
    A("v_lshlrev_b32 v4, 6, v10")
    A("v_and_b32 v11, 1, v1")
    A("v_lshl_add_u32 v4, v11, 5, v4")
    A("v_bfe_u32 v11, v1, 4, 1")
    A("v_lshl_add_u32 v4, v11, 4, v4")
    A("v_bfe_u32 v12, v1, 1, 1")
    A("v_lshl_add_u32 v4, v12, 3, v4")
    A("v_bfe_u32 v12, v1, 2, 2")
    A("v_lshlrev_b32 v13, 3, v12")
    A("v_sub_u32 v4, v4, v13")
    A("s_add_u32 s14, s13, 32")
    A("v_add_u32 v4, s14, v4")
    A("v_and_b32 v13, 3, v1")
    A("v_lshl_add_u32 v13, v11, 2, v13")
    A("v_sub_u32 v14, v13, v10")
    A("v_add_u32 v14, 2, v14")
    A("v_lshrrev_b32 v15, 1, v14")
    A("v_lshlrev_b32 v5, 7, v15")
    A("v_and_b32 v14, 1, v14")
    A("v_lshl_add_u32 v5, v14, 4, v5")
    A("v_lshl_add_u32 v5, v12, 5, v5")
    A(f"s_add_u32 s14, s13, {KSZ}")
    A("v_add_u32 v5, s14, v5")
    A("v_mul_u32_u24 v6, 129, v12")
    A("v_lshl_add_u32 v6, v13, 1, v6")
    A("v_add_u32 v6, v6, v10")
    A(f"s_add_u32 s14, s13, {KSZ+USZ}")
    A("v_lshl_add_u32 v6, v6, 4, s14")
    A("v_and_b32 v14, 1, v12")
    A("v_mul_u32_u24 v14, 3, v14")
    A("v_xor_b32 v14, s11, v14")
    A("v_lshrrev_b32 v15, 1, v12")
    A("v_lshlrev_b32 v7, 9, v14")
    A("v_lshrrev_b32 v16, 1, v13")
    A("v_lshl_add_u32 v7, v16, 7, v7")
    A("v_and_b32 v16, 1, v13")
    A("v_lshl_add_u32 v7, v16, 4, v7")
    A("v_lshl_add_u32 v7, v10, 3, v7")
    A("v_lshl_add_u32 v7, v15, 2, v7")
    A(f"s_add_u32 s14, s13, {KSZ+512}")
    A("v_add_u32 v7, s14, v7")
    A("v_lshlrev_b32 v16, 9, v14")
    A("v_lshl_add_u32 v16, v13, 6, v16")
    A("v_lshl_add_u32 v16, v10, 5, v16")
    A("v_lshl_add_u32 v16, v15, 4, v16")
    YST = opt.get("yst", 4096)
    A("s_lshr_b32 s12, s12, 12")
    A(f"s_mul_i32 s12, s12, {YST}")
    A(f"s_add_u32 s12, s12, {YT_OFF}")
    stamp(A, opt, 1)
    A("s_waitcnt vmcnt(2) lgkmcnt(0)")
    A("s_barrier")
    stamp(A, opt, 2)
    ZA = 64; FR = 128
    U = 32
    def Freg(st, q): return FR + st * 64 + q * 4
    def Greg(st, d): return FR + st * 64 + 32 + d * 4
    def ldF(w, q):
        b = Freg(w & 1, q); pp = 4 * q + w
        return [f"ds_read_b64_tr_b16 v[{b}:{b+1}], v4 offset:{128*pp+32}", f"ds_read_b64_tr_b16 v[{b+2}:{b+3}], v4 offset:{128*pp}"]
    def ldG(w, d):
        b = Greg(w & 1, d)
        return [f"ds_read_b128 v[{b}:{b+3}], v5 offset:{512*d+128*(3-w)}"]
    A("s_cmp_eq_u32 s11, 0")
    A("s_cbranch_scc0 .LB_t1")
    for ty in range(2):
        if ty: A(".LB_t1:")
        tiles = [0, 3, 4, 7] if ty == 0 else [1, 2, 5, 6]
        nf = tiles[-1] + 1
        prs = [(q, at - q, ti) for ti, at in enumerate(tiles) for q in range(at + 1)]
        prs.sort(key=lambda x: (max(x[0], x[1]), x[2]))
        seq = []; rem = prs[:]
        while rem:
            k = 0
            if seq and rem[0][2] == seq[-1][2]:
                for kk in range(1, min(4, len(rem))):
                    if rem[kk][2] != seq[-1][2]: k = kk; break
            seq.append(rem.pop(k))
        def loads(w):
            L = []
            for i in range(nf): L.append((("F", i), ldF(w, i))); L.append((("G", i), ldG(w, i)))
            return L
        first = {}
        for w in range(4):
            if w == 0:
                L = loads(0); flat = []; pos = {}
                for key, ins in L:
                    flat += ins; pos[key] = len(flat)
                issued = 0
                def pump(upto):
                    nonlocal issued
                    while issued < min(upto, len(flat)): A(flat[issued]); issued += 1
                nxt = sum((ins for _, ins in loads(1)), [])
                flat_all = flat + nxt
                flat = flat_all
                pump(12)
            else:
                A("s_waitcnt lgkmcnt(0)")
                flat = sum((ins for _, ins in loads(w + 1)), []) if w < 3 else \
                    [f"ds_read_b32 v{U+4*p+b}, v7 offset:{2048*p+32*b}" for p in range(2) for b in range(4)]
                issued = 0
            waited = 0
            for n, (q, d, ti) in enumerate(seq):
                if w == 0:
                    need_ = max(pos[("F", q)], pos[("G", d)])
                    if need_ > waited:
                        pump(need_)
                        A(f"s_waitcnt lgkmcnt({min(15, issued - need_)})"); waited = need_
                c = f"v[{ZA+16*ti}:{ZA+16*ti+15}]"
                a = Freg(w & 1, q); b = Greg(w & 1, d)
                A(f"v_mfma_f32_32x32x16_bf16 {c}, v[{a}:{a+3}], v[{b}:{b+3}], {c if ti in first else '0'}")
                first[ti] = 1
                pump(issued + (3 if w == 0 else 2))
            pump(len(flat))
        for ti in range(4):
            A(f"ds_write_b128 v6, v[{ZA+16*ti+12}:{ZA+16*ti+15}] offset:{256*tiles[ti]+16}")
        A("v_mov_b32 v8, 1")
        A("s_lshl_b32 s14, s3, 2")
        A(f"s_add_u32 s14, s14, {FL}")
        A("v_mov_b32 v9, s14")
        A("v_xor_b32 v10, 4, v9")
        A("s_waitcnt lgkmcnt(0)")
        A("ds_write_b32 v9, v8")
        A("s_mov_b32 s28, 0x100000")
        A(f".LB_hw{ty}:")
        A("ds_read_b32 v11, v10")
        A("s_sub_u32 s28, s28, 1")
        A(f"s_cbranch_scc1 .LB_hx{ty}")
        A("s_waitcnt lgkmcnt(0)")
        A("v_readfirstlane_b32 s14, v11")
        A("s_cmp_eq_u32 s14, 0")
        A(f"s_cbranch_scc1 .LB_hw{ty}")
        A(f".LB_hx{ty}:")
        HR = 128
        for ti in range(4):
            A(f"ds_read_b128 v[{HR+4*ti}:{HR+4*ti+3}], v6 offset:{256*tiles[ti]}")
        if ty == 0: A("s_branch .LB_tdone")
    A(".LB_tdone:")
    stamp(A, opt, 3)
    HR = 128; S = 144; O = 192
    def z(ti, i): return HR + 4 * ti + 4 + i if i < 0 else ZA + 16 * ti + i
    for ti in range(4):
        for i in range(9):
            A(f"v_add_f32_dpp v{S+12*ti+i}, v{z(ti,i+7)}, v{z(ti,i+5)} row_ror:8 row_mask:0xf bank_mask:0xc")
    for ti in range(4):
        for i in range(3, 9):
            A(f"v_add_f32_dpp v{S+12*ti+i}, v{z(ti,i-3)}, v{z(ti,i-1)} row_ror:8 row_mask:0xf bank_mask:0x3")
    A("s_waitcnt lgkmcnt(0)")
    for ti in range(4):
        for i in range(3):
            A(f"v_add_f32_dpp v{S+12*ti+i}, v{z(ti,i-3)}, v{z(ti,i-1)} row_ror:8 row_mask:0xf bank_mask:0x3")
    A("s_lshl_b32 s14, s17, 16")
    A("s_and_b32 s15, s17, 0xffff0000")
    A("s_cmp_eq_u32 s10, 0")
    A("s_cselect_b32 s14, s14, s15")
    for p in range(2):
        a_, b_ = S + 12 * (2 * p), S + 12 * (2 * p + 1)
        for k in range(8):
            A(f"v_add_f32_dpp v{O+8*p+k}, v{a_+k}, v{a_+k+1} row_shl:4 row_mask:0xf bank_mask:0x5")
        for k in range(8):
            A(f"v_add_f32_dpp v{O+8*p+k}, v{b_+k+1}, v{b_+k} row_shr:4 row_mask:0xf bank_mask:0xa")
    T = 64
    for p in range(2):
        for b in range(4):
            A(f"v_lshlrev_b32 v{T+8*p+b}, 16, v{U+4*p+b}")
            A(f"v_and_b32 v{T+8*p+b+4}, 0xffff0000, v{U+4*p+b}")
        if opt.get("mimic", 1):
            for k in range(8): A(f"v_mul_f32 v{T+8*p+k}, s14, v{T+8*p+k}")
            for k in range(0, 8, 2):
                A(f"v_cvt_pk_bf16_f32 v{T+8*p+k+1}, v{T+8*p+k}, v{T+8*p+k+1}")
                A(f"v_cvt_pk_bf16_f32 v{O+8*p+k+1}, v{O+8*p+k}, v{O+8*p+k+1}")
            for k in range(0, 8, 2):
                for R in (T, O):
                    A(f"v_lshlrev_b32 v{R+8*p+k}, 16, v{R+8*p+k+1}")
                    A(f"v_and_b32 v{R+8*p+k+1}, 0xffff0000, v{R+8*p+k+1}")
            for k in range(8): A(f"v_add_f32 v{O+8*p+k}, v{O+8*p+k}, v{T+8*p+k}")
        else:
            for k in range(8): A(f"v_fmac_f32 v{O+8*p+k}, s14, v{T+8*p+k}")
        for k in range(4): A(f"v_cvt_pk_bf16_f32 v{80+4*p+k}, v{O+8*p+2*k}, v{O+8*p+2*k+1}")
        if not opt.get("noyst"): A(f"buffer_store_dwordx4 v[{80+4*p}:{83+4*p}], v16, s[52:55], s12 offen offset:{2048*p} sc1")
    A("s_setprio 0")
    A("v_and_b32 v8, 31, v1")
    A("v_lshlrev_b32 v8, 2, v8")
    A("s_lshl_b32 s14, s9, 7")
    A(f"s_add_u32 s14, s14, {FLAG_OFF}")
    A("v_lshrrev_b32 v9, 1, v1")
    A(f"v_mul_u32_u24 v9, {YST}, v9")
    A("v_and_b32 v10, 1, v1")
    A("v_lshl_add_u32 v9, v10, 4, v9")
    A(f"v_add_u32 v10, {32*YST}, v9")
    A(f"s_mul_i32 s15, s9, {64*YST}")
    A("s_lshl_b32 s26, s8, 7")
    A("s_add_u32 s15, s15, s26")
    A("s_lshl_b32 s26, s3, 5")
    A("s_add_u32 s15, s15, s26")
    A(f"s_add_u32 s15, s15, {YT_OFF}")
    A(f"v_mov_b32 v11, {FL+16}")
    A("v_mov_b32 v12, 1")
    A("s_waitcnt vmcnt(0)")
    stamp(A, opt, 4)
    A("s_mov_b64 exec, 1")
    A("ds_add_rtn_u32 v13, v11, v12")
    A("s_waitcnt lgkmcnt(0)")
    A("v_readfirstlane_b32 s26, v13")
    A("s_cmp_lg_u32 s26, 3")
    A("s_cbranch_scc1 .LB_nosig")
    A(f"s_add_u32 s26, s16, {FLAG_OFF}")
    A("v_mov_b32 v13, 0")
    A("buffer_store_dword v12, v13, s[52:55], s26 offen sc1")
    A(".LB_nosig:")
    A("s_mov_b64 exec, -1")
    A(f"s_mov_b32 s28, {0 if opt.get('nopoll') else 0x40000}")
    A(".LB_poll:")
    A("buffer_load_dword v13, v8, s[52:55], s14 offen sc1")
    A("s_sub_u32 s28, s28, 1")
    A("s_cbranch_scc1 .LB_got")
    A("s_waitcnt vmcnt(0)")
    A("v_cmp_ne_u32 vcc, 1, v13")
    A("s_cbranch_vccz .LB_got")
    A(f"s_sleep {opt.get('psleep', 4)}")
    A("s_branch .LB_poll")
    A(".LB_got:")
    if not opt.get("noyld"):
        A("buffer_load_dwordx4 v[64:67], v9, s[52:55], s15 offen sc1")
        A("buffer_load_dwordx4 v[68:71], v10, s[52:55], s15 offen sc1")
    stamp(A, opt, 5)
    A("s_lshl_b32 s26, s3, 11")
    A(f"s_add_u32 s26, s26, {YS}")
    A("v_add_u32 v11, s26, v2")
    A("v_lshrrev_b32 v12, 4, v1")
    A("v_lshlrev_b32 v12, 8, v12")
    A("v_and_b32 v13, 15, v1")
    A("v_lshl_add_u32 v12, v13, 3, v12")
    A("v_add_u32 v12, s26, v12")
    A("v_lshrrev_b32 v14, 4, v1")
    A("v_lshlrev_b32 v14, 11, v14")
    A("v_lshl_add_u32 v14, v13, 4, v14")
    A("s_lshl_b32 s27, s3, 8")
    A("v_add_u32 v14, s27, v14")
    R = 96
    for q in range(8):
        A(f"v_lshlrev_b32 v{R+2*q}, 16, v{XR+q}")
        A(f"v_and_b32 v{R+2*q+1}, 0xffff0000, v{XR+q}")
    A("s_waitcnt vmcnt(0)")
    A("ds_write_b128 v11, v[64:67]")
    A("ds_write_b128 v11, v[68:71] offset:1024")
    A("s_waitcnt lgkmcnt(0)")
    for hf in range(2):
        for n in range(2):
            A(f"ds_read_b64_tr_b16 v[{72+4*hf+2*n}:{73+4*hf+2*n}], v12 offset:{hf*1024+n*128}")
    A("s_waitcnt lgkmcnt(0)")
    for q in range(8):
        A(f"v_lshlrev_b32 v{80+2*(q&3)}, 16, v{72+q}")
        A(f"v_and_b32 v{81+2*(q&3)}, 0xffff0000, v{72+q}")
        A(f"v_add_f32 v{R+2*q}, v{R+2*q}, v{80+2*(q&3)}")
        A(f"v_add_f32 v{R+2*q+1}, v{R+2*q+1}, v{81+2*(q&3)}")
        A(f"v_cvt_pk_bf16_f32 v{R+2*q+1}, v{R+2*q}, v{R+2*q+1}")
    for q in range(8):
        A(f"v_lshlrev_b32 v{R+2*q}, 16, v{R+2*q+1}")
        A(f"v_and_b32 v{R+2*q+1}, 0xffff0000, v{R+2*q+1}")
    stamp(A, opt, 6)
    A("s_barrier")
    P = 128
    assert 3 * RING + 9216 + 1024 < 65536
    for hf in range(2):
        for j in range(2):
            for q in range(4):
                b = P + (hf * 2 + j) * 16 + q * 4
                A(f"ds_read_b128 v[{b}:{b+3}], v14 offset:{q*RING + hf*8192 + j*1024}")
    for hf in range(2):
        for j in range(2):
            n = hf * 2 + j; b = P + n * 16
            A(f"s_waitcnt lgkmcnt({12-4*n})")
            for e in range(0, 4, 2):
                A(f"v_pk_add_f32 v[{b+e}:{b+e+1}], v[{b+e}:{b+e+1}], v[{b+4+e}:{b+5+e}]")
                A(f"v_pk_add_f32 v[{b+8+e}:{b+9+e}], v[{b+8+e}:{b+9+e}], v[{b+12+e}:{b+13+e}]")
            for e in range(0, 4, 2):
                A(f"v_pk_add_f32 v[{b+e}:{b+e+1}], v[{b+e}:{b+e+1}], v[{b+8+e}:{b+9+e}]")
            for e in range(0, 4, 2):
                A(f"v_cvt_pk_bf16_f32 v{b+e+1}, v{b+e}, v{b+e+1}")
            for e in range(0, 4, 2):
                A(f"v_lshlrev_b32 v{b+e}, 16, v{b+e+1}")
                A(f"v_and_b32 v{b+e+1}, 0xffff0000, v{b+e+1}")
            for e in range(0, 4, 2):
                r = R + 4 * n + e
                A(f"v_pk_add_f32 v[{b+e}:{b+e+1}], v[{b+e}:{b+e+1}], v[{r}:{r+1}]")
            for e in range(0, 4, 2):
                A(f"v_cvt_pk_bf16_f32 v{64+2*n+e//2}, v{b+e}, v{b+e+1}")
        A(f"buffer_store_dwordx4 v[{64+4*hf}:{67+4*hf}], v3, s[48:51], s24 offen offset:{64*hf}")
    A("s_add_u32 s3, s3, 4")
    A(".LB_fin:")
    if opt.get("stamps"):
        A("s_waitcnt vmcnt(0)")
        stamp(A, opt, 7)
        A("s_memrealtime s[78:79]")
        A("s_waitcnt lgkmcnt(0)")
        for q in range(1, 8): A(f"s_sub_u32 s{80+2*q}, s{80+2*q}, s80")
        A("v_mov_b32 v64, s76"); A("v_mov_b32 v65, s78")
        for q in range(1, 8): A(f"v_mov_b32 v{65+q}, s{80+2*q}")
        A("s_lshl_b32 s68, s2, 3"); A("s_add_u32 s68, s68, s3"); A("s_lshl_b32 s68, s68, 6")
        A(f"s_add_u32 s68, s68, {STAMPB_OFF}")
        A("v_mov_b32 v62, 0")
        A("s_mov_b64 exec, 1")
        A("buffer_store_dwordx4 v[64:67], v62, s[52:55], s68 offen")
        A("buffer_store_dwordx4 v[68:71], v62, s[52:55], s68 offen offset:16")
        A("buffer_store_dword v72, v62, s[52:55], s68 offen offset:32")
    A(".LB_end:")
    A("s_endpgm")
    return A.L
```

```python
import math
from fw import *

H_OFF = 0x0
XND_OFF = 0x800000
ST_OFF = 0xA00000
CS_OFF = 0xA10000
YT_OFF = 0xC00000
FH_OFF = 0xEC0000
FY_OFF = 0xED0000
EP_OFF = 0xEE0000
STAMP_OFF = 0xF00000
KD_OFF = 0x1000000
WS_SIZE = 0x1200000

LOG2E = 1.4426950408889634
def split_hi(c, bits):
    m, e = math.frexp(c); hi = math.ldexp(round(m * (1 << bits)), e - bits); return hi, c - hi

WR = 98304
CB = 131072; CH = 16384
KSZ, USZ, HSZ = 4160, 4608, 3 * 129 * 16
STL = CB + 14976
FL = CB + 16128
CSL = CB + CH + 14976
RREG = [65536, 0, 98304, 32768]
LDS_F = 163840
SX, SG, SU, SD, SO, SW, SB = "s[48:51]", "s[52:55]", "s[56:59]", "s[60:63]", "s[64:67]", "s[68:71]", "s[72:75]"

class Cnt:
    def __init__(s, A, name, mx): s.A = A; s.q = []; s.done = -1; s.name = name; s.mx = mx
    def op(s, text, tag=None): s.A(text); s.q.append(tag)
    def wait(s, *tags):
        idx = max(i for i, t in enumerate(s.q) if t in tags)
        if idx > s.done:
            n = len(s.q) - 1 - idx
            s.A(f"s_waitcnt {s.name}({min(n, s.mx)})")
            s.done = idx if n <= s.mx else len(s.q) - 1 - s.mx
    def all(s):
        s.A(f"s_waitcnt {s.name}(0)"); s.done = len(s.q) - 1

def stamp(A, opt, idx):
    if opt.get("stamps"): A(f"s_memtime s[{80+2*idx}:{81+2*idx}]")

def cmul(L, d, x, e):
    L.append(f"v_mul_f32 v{d}, v{x}, v{e}")
    L.append(f"v_mul_f32 v{d+1}, v{x}, v{e+1}")
    L.append(f"v_fma_f32 v{d}, -v{x+1}, v{e+1}, v{d}")
    L.append(f"v_fmac_f32 v{d+1}, v{x+1}, v{e}")

NEXT = "NEXT"
def kgen(opt):
    L = []
    L.append("v_lshl_add_u32 v44, v1, 2, s14")
    for j in range(1, 16): L.append(f"v_xor_b32 v{44+j}, {j<<4}, v44")
    L.append("v_and_b32 v60, 31, v1")
    L.append("v_lshrrev_b32 v61, 5, v1")
    L.append("v_and_b32 v62, 15, v1")
    L.append("v_xor_b32 v62, v62, v61")
    L.append("v_lshlrev_b32 v62, 4, v62")
    L.append("v_lshl_add_u32 v62, v60, 8, v62")
    L.append("v_add_u32 v216, s14, v62")
    for j in range(1, 8): L.append(f"v_xor_b32 v{216+j}, {j<<5}, v216")
    L.append(("vmwait", "par"))
    chi, clo = split_hi(LOG2E, 16)
    L += [f"v_mul_f32 v64, {fhex(chi)}, v36", "v_rndne_f32 v65, v64", "v_sub_f32 v64, v64, v65", f"v_fmac_f32 v64, {fhex(clo)}, v36",
          "v_exp_f32 v64, v64", "v_cvt_i32_f32 v65, v65", "v_ldexp_f32 v64, v64, v65", "v_cvt_pk_bf16_f32 v64, v64, v64", "v_lshlrev_b32 v64, 16, v64",
          "v_mul_f32 v37, v64, v37", "v_mul_f32 v38, v64, v38", f"v_mul_f32 v37, {fhex(LOG2E)}, v37", f"v_mul_f32 v38, {fhex(1/(2*math.pi))}, v38"]
    def direct(d, pos, t):
        if pos == 1:
            L.append(f"v_exp_f32 v{t}, v37"); L.append(f"v_fract_f32 v{t+1}, v38")
        else:
            L.append(f"v_mul_f32 v{t}, {fhex(float(pos))}, v37"); L.append(f"v_mul_f32 v{t+1}, {fhex(float(pos))}, v38")
            L.append(f"v_exp_f32 v{t}, v{t}"); L.append(f"v_fract_f32 v{t+1}, v{t+1}")
        L.append(f"v_cos_f32 v{d}, v{t+1}"); L.append(f"v_sin_f32 v{d+1}, v{t+1}")
        L.append(f"v_mul_f32 v{d}, v{d}, v{t}"); L.append(f"v_mul_f32 v{d+1}, v{d+1}, v{t}")
    tmpc = [0]
    def put(rows, z, neg):
        t = 208 + (tmpc[0] % 6); tmpc[0] += 1
        L.append(f"v_cvt_pk_bf16_f32 v{t}, v{z}, {'-' if neg else ''}v{z+1}")
        for rr in rows: L.append(f"ds_write_b32 v{44+(rr&15)}, v{t} offset:{rr*256}")
    L.append("v_mul_f32 v66, v64, v39"); L.append("v_mul_f32 v67, v64, v40")
    direct(70, 8, 72)
    cmul(L, 74, 41, 66)
    cmul(L, 72, 70, 70)
    cmul(L, 76, 74, 70)
    cur = [74, 76]; nxt = [78, 80]
    for i in range(0, 32, 2):
        if i + 2 < 32:
            cmul(L, nxt[0], cur[0], 72); cmul(L, nxt[1], cur[1], 72)
        put([i], cur[0], False); put([i + 1], cur[1], False)
        cur, nxt = nxt, cur
    rowof = lambda r, hh: (r & 3) + 8 * (r >> 2) + 4 * hh
    posrows = {}
    lay = {0: [0,1,2,3,4,5,6,7,512,516,520,1024,1032,1536,1544], 1: [256,256,258,260,260,260,262,264,768,772,776,1280,1288,1792,1800]}
    for hh in (0, 1):
        for r, p in enumerate(lay[hh]): posrows.setdefault(p, []).append(rowof(r, hh))
    reg = {}; nreg = [66]
    def new(p):
        reg[p] = nreg[0]; nreg[0] += 2; return reg[p]
    direct(new(1), 1, 124)
    L.append("s_waitcnt lgkmcnt(0)")
    for ks in range(8): L.append(f"ds_read_b128 v[{128+4*ks}:{131+4*ks}], v{216+ks}")
    direct(new(256), 256, 126)
    plan = [(2,1,1),(512,256,256),(3,2,1),(4,2,2),(768,512,256),(1024,512,512),(258,256,2),(8,4,4),(5,4,1),(6,4,2),(7,4,3),
            (1280,1024,256),(1536,1024,512),(1792,1024,768),(260,256,4),(516,512,4),(772,768,4),(262,256,6),(264,256,8),(520,512,8),(776,768,8),
            (1032,1024,8),(1288,1280,8),(1544,1536,8),(1800,1792,8)]
    pend = [1, 256]
    for n, (p, a, b) in enumerate(plan):
        assert a + b == p
        cmul(L, new(p), reg[a], reg[b])
        pend.append(p)
        if n == 2:
            L.append("v_mov_b32 v214, 0x3f80")
            L.append("s_waitcnt lgkmcnt(0)")
            for rr in posrows[0]: L.append(f"ds_write_b32 v{44+(rr&15)}, v214 offset:{rr*256}")
        if n >= 2:
            for _ in range(2 if len(pend) > 3 else 1):
                q = pend.pop(0)
                if q in posrows: put(posrows[q], reg[q], True)
    for q in pend:
        if q in posrows: put(posrows[q], reg[q], True)
    assert nreg[0] <= 124
    L.append("s_waitcnt lgkmcnt(0)")
    for ks in range(8): L.append(f"ds_read_b128 v[{160+4*ks}:{163+4*ks}], v{216+ks}")
    L.append("s_lshl_b32 s15, s11, 12")
    L.append("s_add_u32 s15, s15, s13")
    L.append("v_lshl_add_u32 v62, v1, 4, s15")
    L.append("v_xor_b32 v63, 4096, v62")
    for ks in range(8):
        L.append(f"s_waitcnt lgkmcnt({7-ks})")
        L.append(f"v_mfma_f32_32x32x16_bf16 v[192:207], v[{160+4*ks}:{163+4*ks}], v[{128+4*ks}:{131+4*ks}], {'0' if ks == 0 else 'v[192:207]'}")
    L.append(NEXT)
    for q in range(4): L.append(f"ds_write_b128 v62, v[{192+4*q}:{195+4*q}] offset:{8192+1024*q}")
    L.append("s_waitcnt lgkmcnt(0)")
    L.append(NEXT)
    for q in range(4): L.append(f"ds_read_b128 v[{128+4*q}:{131+4*q}], v63 offset:{8192+1024*q}")
    L.append("v_and_b32 v62, 1, v1")
    L.append("v_cmp_eq_u32 vcc, 0, v62")
    L.append("v_lshl_add_u32 v63, v1, 4, s13")
    for r in range(64, 68): L.append(f"v_mov_b32 v{r}, 0")
    L.append("s_waitcnt lgkmcnt(0)")
    for r in range(15): L.append(f"v_add_f32 v{192+r}, v{192+r}, v{128+r}")
    a = lambda r: f"v{192+r}"
    pk = lambda d, lo, hi: L.append(f"v_cvt_pk_bf16_f32 v{d}, {lo}, {hi}")
    pk(144, a(0), a(1)); pk(145, a(2), a(3)); pk(146, a(4), a(5)); pk(147, a(6), a(7))
    pk(148, a(8), a(8)); pk(149, a(8), a(9)); pk(150, a(9), a(9)); pk(151, a(10), a(10))
    for (z, b) in ((11, 152), (13, 156)):
        L.append(f"v_cndmask_b32 v62, {a(z+1)}, {a(z)}, vcc")
        pk(b, a(z), a(z)); L.append(f"v_mov_b32 v{b+1}, v{b}"); pk(b+2, "v62", a(z+1)); pk(b+3, a(z+1), a(z+1))
    for q in range(4): L.append(f"ds_write_b128 v63, v[{144+4*q}:{147+4*q}] offset:{64+1024*q}")
    if opt.get("kdump"):
        L.append("v_lshlrev_b32 v62, 4, v1")
        L.append("s_lshl_b32 s15, s12, 12")
        L.append(f"s_add_u32 s15, s15, {KD_OFF}")
        for q in range(4): L.append(("vm", f"buffer_store_dwordx4 v[{144+4*q}:{147+4*q}], v62, {SW}, s15 offen offset:{1024*q}", "kd"))
    L.append("s_waitcnt lgkmcnt(0)")
    L.append(NEXT)
    L.append("v_lshlrev_b32 v60, 4, v1")
    L.append(f"v_add_u32 v62, {KSZ}, v60")
    L.append("v_subrev_u32 v63, 512, v60")
    L.append("v_cmp_gt_u32 vcc, 32, v1")
    L.append("v_cndmask_b32 v62, v63, v62, vcc")
    L.append("v_subrev_u32 v63, 36, v1")
    L.append(f"v_mul_u32_u24 v63, {129*16}, v63")
    L.append(f"v_add_u32 v63, {KSZ+USZ}, v63")
    L.append("v_cmp_gt_u32 vcc, 36, v1")
    L.append("v_cndmask_b32 v62, v63, v62, vcc")
    L.append("v_add_u32 v62, s13, v62")
    L.append("v_and_b32 v63, 48, v60")
    L.append(f"v_add_u32 v63, {FL}, v63")
    L.append("v_cmp_gt_u32 vcc, 39, v1")
    L.append("v_cndmask_b32 v62, v63, v62, vcc")
    L.append("ds_write_b128 v62, v[64:67]")
    L.append("s_waitcnt lgkmcnt(0)")
    L.append(NEXT)
    return L

VF, VG, VH, VX, VY, VO = 10, 11, 12, 13, 14, 15
XR = 24; UD = 232
def conv_addr():
    L = []; A = L.append
    A("v_lshrrev_b32 v16, 5, v1")
    A(f"v_lshlrev_b32 v{VF}, 6, v16")
    A("v_and_b32 v17, 1, v1")
    A(f"v_lshl_add_u32 v{VF}, v17, 5, v{VF}")
    A("v_bfe_u32 v17, v1, 4, 1")
    A(f"v_lshl_add_u32 v{VF}, v17, 4, v{VF}")
    A("v_bfe_u32 v18, v1, 1, 1")
    A(f"v_lshl_add_u32 v{VF}, v18, 3, v{VF}")
    A("v_bfe_u32 v18, v1, 2, 2")
    A("v_lshlrev_b32 v19, 3, v18")
    A(f"v_sub_u32 v{VF}, v{VF}, v19")
    A("s_add_u32 s15, s13, 32")
    A(f"v_add_u32 v{VF}, s15, v{VF}")
    A("v_and_b32 v19, 3, v1")
    A("v_lshl_add_u32 v19, v17, 2, v19")
    A("v_sub_u32 v20, v19, v16")
    A("v_add_u32 v20, 2, v20")
    A("v_lshrrev_b32 v21, 1, v20")
    A(f"v_lshlrev_b32 v{VG}, 7, v21")
    A("v_and_b32 v20, 1, v20")
    A(f"v_lshl_add_u32 v{VG}, v20, 4, v{VG}")
    A(f"v_lshl_add_u32 v{VG}, v18, 5, v{VG}")
    A(f"s_add_u32 s15, s13, {KSZ}")
    A(f"v_add_u32 v{VG}, s15, v{VG}")
    A(f"v_mul_u32_u24 v{VH}, 129, v18")
    A(f"v_lshl_add_u32 v{VH}, v19, 1, v{VH}")
    A(f"v_add_u32 v{VH}, v{VH}, v16")
    A(f"s_add_u32 s15, s13, {KSZ+USZ-129*16}")
    A(f"v_lshl_add_u32 v{VH}, v{VH}, 4, s15")
    A("v_and_b32 v20, 1, v18")
    A("v_mul_u32_u24 v20, 3, v20")
    A("v_xor_b32 v20, s11, v20")
    A("v_lshrrev_b32 v21, 1, v18")
    A(f"v_lshlrev_b32 v{VX}, 9, v20")
    A("v_lshrrev_b32 v22, 1, v19")
    A(f"v_lshl_add_u32 v{VX}, v22, 7, v{VX}")
    A("v_and_b32 v22, 1, v19")
    A(f"v_lshl_add_u32 v{VX}, v22, 4, v{VX}")
    A(f"v_lshl_add_u32 v{VX}, v16, 3, v{VX}")
    A(f"v_lshl_add_u32 v{VX}, v21, 2, v{VX}")
    A(f"s_add_u32 s15, s13, {KSZ+512}")
    A(f"v_add_u32 v{VX}, s15, v{VX}")
    A(f"v_lshlrev_b32 v{VY}, 9, v20")
    A(f"v_lshl_add_u32 v{VY}, v19, 6, v{VY}")
    A(f"v_lshl_add_u32 v{VY}, v16, 5, v{VY}")
    A(f"v_lshl_add_u32 v{VY}, v21, 4, v{VY}")
    A("v_and_b32 v16, 15, v1")
    A("v_lshrrev_b32 v17, 4, v1")
    A(f"v_lshlrev_b32 v{VO}, 10, v16")
    A(f"v_lshl_add_u32 v{VO}, v17, 4, v{VO}")
    A("s_lshl_b32 s24, s8, 2")
    A("s_add_u32 s24, s24, s10")
    A("s_lshl_b32 s24, s24, 14")
    A("s_lshl_b32 s25, s9, 7")
    A("s_add_u32 s24, s24, s25")
    A("v_lshrrev_b32 v16, 1, v1")
    A("v_lshlrev_b32 v16, 14, v16")
    A("v_and_b32 v17, 1, v1")
    A("v_lshl_add_u32 v16, v17, 6, v16")
    A("s_lshr_b32 s26, s12, 2")
    A("s_lshl_b32 s26, s26, 7")
    A("s_and_b32 s27, s12, 3")
    A("s_lshl_b32 s27, s27, 4")
    A("s_add_u32 s26, s26, s27")
    A(f"s_add_u32 s26, s26, {XND_OFF}")
    A(f"s_add_u32 s15, s13, {KSZ+512}")
    A("v_lshl_add_u32 v17, v1, 4, s15")
    A("v_min_u32 v18, 32, v1")
    A("v_lshlrev_b32 v18, 2, v18")
    return L

def weight(it):
    if isinstance(it, tuple): return 4 if it[0] == "vm" else 0
    if it.startswith("v_mfma"): return 8
    if it.startswith(TRANS): return 2
    if it.startswith("s_waitcnt lgkm"): return 6
    if it.startswith("ds_write_b128"): return 3
    if it.startswith("s_"): return 0.5
    return 1

def gen_kf(opt):
    A = Asm()
    ld = opt.get("ldflag", "")
    A("s_cmp_ge_u32 s2, 256")
    A("s_cbranch_scc1 .L_end")
    A("s_load_dwordx16 s[16:31], s[0:1], 0")
    A("s_load_dwordx16 s[32:47], s[0:1], 64")
    stamp(A, opt, 0)
    if opt.get("stamps"): A("s_memrealtime s[76:77]")
    A("v_lshrrev_b32 v2, 6, v0")
    A("v_and_b32 v1, 63, v0")
    A("v_readfirstlane_b32 s3, v2")
    A("s_and_b32 s6, s2, 7")
    A("s_lshr_b32 s7, s2, 3")
    A("s_lshr_b32 s4, s6, 2")
    A("s_lshl_b32 s4, s4, 2")
    A("s_and_b32 s5, s7, 3")
    A("s_add_u32 s4, s4, s5")
    A("s_lshl_b32 s8, s6, 2")
    A("s_add_u32 s8, s8, s5")
    A("s_lshr_b32 s9, s7, 2")
    A("s_and_b32 s5, s6, 3")
    A("s_cmp_lt_u32 s3, 4")
    A("s_cbranch_scc1 .L_w03")
    vm = Cnt(A, "vmcnt", 63)
    A("s_sub_u32 s10, s3, 4")
    A("v_lshrrev_b32 v8, 3, v1")
    A("v_and_b32 v9, 7, v1")
    A("v_lshrrev_b32 v10, 4, v1")
    A("v_xor_b32 v11, v9, v10")
    A("v_lshlrev_b32 v11, 4, v11")
    A("v_lshl_add_u32 v2, v8, 10, v11")
    A("v_xor_b32 v3, 64, v2")
    A("v_add_u32 v3, 7168, v3")
    A("v_add_u32 v4, 14336, v2")
    A("v_add_u32 v5, 14336, v3")
    A("s_lshl_b32 s78, s4, 2")
    A("s_add_u32 s78, s78, s10")
    A("s_lshl_b32 s78, s78, 16")
    A("s_add_u32 s79, s4, s9")
    A("s_lshl_b32 s79, s79, 1")
    if opt.get("norot"): A("s_mov_b32 s79, 0")
    A("s_lshl_b32 s100, s10, 13")
    A("s_mov_b32 s50, 0x200000"); A("s_mov_b32 s51, 0x20000")
    A("v_and_b32 v10, 1, v10")
    A("v_lshlrev_b32 v11, 1, v10")
    A("v_xor_b32 v11, v9, v11")
    A("v_lshlrev_b32 v11, 4, v11")
    A("v_lshl_add_u32 v12, s10, 3, v8")
    A("v_mul_u32_u24 v12, 3584, v12")
    A("v_add_u32 v6, v12, v11")
    A("v_xor_b32 v7, 64, v6")
    A("s_mul_i32 s101, s5, 7")
    A(f"s_mov_b32 s54, {512*3584}"); A("s_mov_b32 s55, 0x20000")
    A(f"s_mov_b32 s58, {512*3584}"); A("s_mov_b32 s59, 0x20000")
    A("s_lshr_b32 s12, s10, 1")
    A(f"s_lshl_b32 s13, s12, 14")
    A(f"s_add_u32 s13, s13, {CB}")
    A("s_lshl_b32 s14, s2, 1")
    A("s_add_u32 s12, s12, s14")
    A("s_and_b32 s11, s10, 1")
    A("s_lshl_b32 s14, s12, 8")
    A("s_lshl_b32 s15, s11, 7")
    A("s_add_u32 s14, s14, s15")
    A("v_lshl_add_u32 v34, v1, 1, s14")
    A("s_lshl_b32 s15, s12, 1")
    A("v_mov_b32 v35, s15")
    for r in range(36, 43): A(f"v_mov_b32 v{r}, 0")
    A("s_lshl_b32 s14, s11, 13")
    A("s_add_u32 s14, s14, s13")
    A("v_lshlrev_b32 v10, 2, v10")
    A("v_xor_b32 v9, v9, v10")
    A("v_lshlrev_b32 v9, 4, v9")
    A("v_lshl_add_u32 v8, v8, 10, v9")
    A("v_add_u32 v9, 7168, v8")
    A("s_cmp_ge_u32 s7, 28")
    A("s_waitcnt lgkmcnt(0)")
    A("s_mov_b64 s[48:49], s[16:17]")
    A("s_mov_b64 s[52:53], s[36:37]")
    A("s_mov_b64 s[56:57], s[38:39]")
    A("s_cbranch_scc1 .L_haux")
    A("s_add_u32 s101, s101, s9")
    A("s_lshl_b32 s101, s101, 7")
    def srds():
        return ["s_mov_b64 s[60:61], s[40:41]", f"s_mov_b32 s62, {1792*1024}", "s_mov_b32 s63, 0x20000",
                "s_mov_b64 s[64:65], s[42:43]", "s_mov_b32 s66, 0x200000", "s_mov_b32 s67, 0x20000",
                "s_mov_b64 s[68:69], s[46:47]", f"s_mov_b32 s70, {WS_SIZE}", "s_mov_b32 s71, 0x20000",
                "s_mov_b64 s[72:73], s[44:45]", "s_mov_b32 s74, 256", "s_mov_b32 s75, 0x20000"]
    def dx(i, tb):
        L = [f"s_add_u32 s44, s79, {i}", "s_and_b32 s44, s44, 7", "s_lshl_b32 s44, s44, 7", "s_add_u32 s44, s44, s78"]
        if tb: L.append("s_add_u32 s44, s44, 32768")
        L.append(f"s_add_u32 m0, s100, {(i % 3) * 32768 + tb * 4096}")
        out = [L + [("vm", f"buffer_load_dwordx4 v2, {SX}, s44 offen lds{ld}", ("x", i))]]
        for q in range(1, 4): out.append([f"s_add_u32 m0, s100, {(i % 3) * 32768 + tb * 4096}", ("vm", f"buffer_load_dwordx4 v{2+q}, {SX}, s44 offen offset:{q*1024} lds{ld}", ("x", i))])
        return out
    def dw(h):
        L = [f"s_add_u32 s45, s79, {h >> 1}", "s_and_b32 s45, s45, 7", f"s_mul_i32 s45, s45, {64*3584}", "s_add_u32 s45, s45, s101"]
        if h & 1: L.append(f"s_add_u32 s45, s45, {32*3584}")
        L += ["s_lshr_b32 m0, s100, 2", f"s_add_u32 m0, m0, {WR + (h & 3) * 8192}"]
        return [L + [("vm", f"buffer_load_dwordx4 v6, {SG}, s45 offen lds{ld}", ("w", h))],
                ["s_lshr_b32 m0, s100, 2", f"s_add_u32 m0, m0, {WR + (h & 3) * 8192 + 1024}", ("vm", f"buffer_load_dwordx4 v7, {SU}, s45 offen lds{ld}", ("w", h))]]
    wld = opt.get("wld", "")
    def dd(s):
        o = RREG[s >> 2] + (s & 3) * 2048
        return [[f"s_add_u32 s47, s46, {s*16384}", f"s_add_u32 m0, s100, {o}", ("vm", f"buffer_load_dwordx4 v8, {SD}, s47 offen lds{wld}", ("d", s))],
                [f"s_add_u32 m0, s100, {o}", ("vm", f"buffer_load_dwordx4 v9, {SD}, s47 offen offset:1024 lds{wld}", ("d", s))]]
    def emit(c, it):
        if isinstance(it, tuple):
            if it[0] == "vm": c.op(it[1], it[2])
            elif it[0] == "vmwait": c.wait(*it[1:])
            else: raise Exception(it)
        else: A(it)
    def emitg(c, groups):
        for g in groups:
            for it in g: emit(c, it)
    def params(c):
        for r, sb in ((36, 30), (37, 18), (38, 20), (39, 22), (40, 24), (41, 26), (42, 28)):
            c.op(f"global_load_short_d16_hi v{r}, v{35 if r == 36 else 34}, s[{sb}:{sb+1}]", "par")
    def late_setup():
        return srds() + ["s_mul_i32 s46, s10, 28", "s_lshl_b32 s46, s46, 14", "s_lshl_b32 s47, s9, 7", "s_add_u32 s46, s46, s47",
                         "s_and_b32 s15, s12, -2", "s_lshl_b32 s15, s15, 1", "s_load_dword s17, s[32:33], s15"]
    A("s_mov_b64 s[68:69], s[46:47]")
    A("s_mov_b64 s[72:73], s[44:45]")
    def late_setup2():
        return [x for x in late_setup() if not x.startswith(("s_mov_b64 s[68", "s_mov_b64 s[72"))]
    if opt.get("parfirst"): params(vm)
    emitg(vm, dx(0, 0)); emitg(vm, dw(0)); emitg(vm, dx(0, 1))
    if not opt.get("parfirst"): params(vm)
    emitg(vm, dw(1)); emitg(vm, dx(1, 0)); emitg(vm, dx(1, 1)); emitg(vm, dw(2)); emitg(vm, dw(3)); emitg(vm, dx(2, 0)); emitg(vm, dx(2, 1))
    for x in late_setup2(): A(x)
    stamp(A, opt, 1)
    work = conv_addr() + kgen(opt)
    def poll_check(c, lab):
        c.wait("poll")
        A("v_cmp_eq_u32 vcc, 0, v19")
        A(f"s_cbranch_vccz {lab}_ok")
        A(f"s_mov_b32 s28, {opt.get('tmo', 0x40000)}")
        A(f"{lab}_spin:")
        A("s_sleep 2")
        A(f"buffer_load_dword v19, v18, {SB}, 0 offen sc1")
        A("s_sub_u32 s28, s28, 1")
        A(f"s_cbranch_scc1 {lab}_ok")
        A("s_waitcnt vmcnt(0)")
        A("v_cmp_eq_u32 vcc, 0, v19")
        A(f"s_cbranch_vccnz {lab}_spin")
        A(f"{lab}_ok:")
        A("s_waitcnt vmcnt(63)")
        A("v_readlane_b32 s29, v19, 32")
    def uloads():
        L = []
        for q in range(4):
            g = [("vm", f"buffer_load_dwordx4 v[{UD+4*q}:{UD+4*q+3}], v16, {SW}, s26 offen sc1", "u")]
            if q < 3: g.append("s_add_u32 s26, s26, 0x80000")
            L.append(g)
        return L
    def xres():
        return [[("vm", f"buffer_load_dwordx4 v[{XR}:{XR+3}], v{VO}, {SX}, s24 offen", "xr")], [("vm", f"buffer_load_dwordx4 v[{XR+4}:{XR+7}], v{VO}, {SX}, s24 offen offset:64", "xr")]]
    def uwrite():
        return [("vmwait", "u")] + [f"ds_write_b128 v17, v[{UD+4*q}:{UD+4*q+3}] offset:{1024*q}" for q in range(4)]
    budget = opt.get("budget", 80)
    PS = opt.get("pollslice", 10)
    while work[0] != ("vmwait", "par"): emit(vm, work.pop(0))
    if opt.get("parfirst"):
        b = opt.get("pre", 100)
        while b > 0: b -= weight(work[0]); emit(vm, work.pop(0))
    for h in range(16):
        vm.wait(("w", h), ("x", h >> 1))
        A("s_barrier")
        if h == 0: stamp(A, opt, 2)
        G = []
        if 1 <= h <= 12: G += dw(h + 3)
        if 2 <= h <= 11: G += dx((h + 4) >> 1, h & 1)
        post = []
        if h == PS:
            assert not work, f"kgen not finished: {len(work)}"
            G = G[:2] + [[("vm", f"buffer_load_dword v19, v18, {SB}, 0 offen sc1", "poll")]] + G[2:]
        if h == PS + 2:
            st = ["s_lshl_b32 s15, s4, 2", "s_add_u32 s15, s15, s10", "s_lshl_b32 s15, s15, 8", f"s_add_u32 s15, s15, {ST_OFF}", "v_lshlrev_b32 v20, 2, v1",
                  ("vm", f"buffer_load_dword v21, v20, {SW}, s15 offen sc1", "st")]
            cs = ["s_lshl_b32 s15, s101, 2", "s_lshl_b32 s27, s10, 7", "s_add_u32 s15, s15, s27", f"s_add_u32 s15, s15, {CS_OFF}", "v_and_b32 v23, 127, v20",
                  ("vm", f"buffer_load_dword v22, v23, {SW}, s15 offen sc1", "st")]
            G = G[:2] + [st, cs] + uloads() + G[2:]
        if h == 12: G += dd(0) + dd(1)
        if h == 13: G += dd(2) + dd(3) + xres()
        if h == 14:
            G += dd(4) + dd(5) + dd(6)
            post = ["s_lshl_b32 s15, s10, 8", f"s_add_u32 s15, s15, {STL}", "v_add_u32 v20, s15, v20", "s_lshl_b32 s15, s10, 7", f"s_add_u32 s15, s15, {CSL}", "v_add_u32 v23, s15, v23",
                    "v_mov_b32 v60, s29", f"v_mov_b32 v61, {FL+40}", ("vmwait", "st"), "ds_write_b32 v20, v21", "ds_write_b32 v23, v22", "ds_write_b32 v61, v60", "s_waitcnt lgkmcnt(0)"]
        if h == 15:
            G += dd(7)
            post = uwrite()
        b = budget + (24 if h < 2 else 0)
        mine = []
        while work:
            if b <= 0 and sum(weight(x) for x in work[:work.index(NEXT)]) > opt.get("slack", 24): break
            it = work.pop(0)
            if it == NEXT: break
            b -= weight(it); mine.append(it)
        tot = sum(weight(x) for x in mine); ng = len(G); acc = 0; gi = 0
        for it in mine:
            while gi < ng and acc >= tot * gi / ng:
                emitg(vm, [G[gi]]); gi += 1
            emit(vm, it); acc += weight(it)
        for g in G[gi:]:
            emitg(vm, [g])
            if not mine and opt.get("gap", 0): A(f"s_nop {opt['gap']}")
        for it in post: emit(vm, it)
        if h == PS + 1: poll_check(vm, ".L_pg")
    A("s_barrier")
    stamp(A, opt, 3)
    A("s_branch .L_conv")
    A(".L_haux:")
    va = Cnt(A, "vmcnt", 63)
    for x in late_setup(): A(x)
    params(va)
    A("s_cmp_eq_u32 s4, 7")
    A("s_cbranch_scc1 .L_nocs")
    A("s_add_u32 s101, s101, s4")
    A("v_lshrrev_b32 v10, 2, v1")
    A("v_mul_u32_u24 v10, 3584, v10")
    A("v_and_b32 v11, 3, v1")
    A("v_lshl_add_u32 v10, v11, 4, v10")
    A("s_cmp_lt_u32 s10, 2")
    A("s_cselect_b64 s[52:53], s[52:53], s[56:57]")
    A("s_lshl_b32 s15, s101, 7")
    A("s_lshl_b32 s27, s11, 6")
    A("s_add_u32 s15, s15, s27")
    for it in range(32):
        A(f"buffer_load_dwordx4 v[{128+4*it}:{131+4*it}], v10, {SG}, s15 offen")
        if it < 31: A(f"s_add_u32 s15, s15, {16*3584}")
    for r in range(64, 72): A(f"v_mov_b32 v{r}, 0")
    A("s_mov_b32 s27, 0x3f80")
    A("s_mov_b32 s28, 0x3f800000")
    for it in range(32):
        A(f"s_waitcnt vmcnt({31-it})")
        for q in range(4):
            A(f"v_dot2c_f32_bf16 v{64+2*q}, s27, v{128+4*it+q}")
            A(f"v_dot2c_f32_bf16 v{65+2*q}, s28, v{128+4*it+q}")
    for rot in (4, 8):
        for r in range(64, 72): A(f"v_add_f32_dpp v{r}, v{r}, v{r} row_ror:{rot} row_mask:0xf bank_mask:0xf")
    for sw in ("v_permlane16_swap_b32", "v_permlane32_swap_b32"):
        for r in range(64, 72): A(f"v_mov_b32 v{r+8}, v{r}")
        for r in range(64, 72): A(f"{sw} v{r}, v{r+8}")
        for r in range(64, 72): A(f"v_add_f32 v{r}, v{r}, v{r+8}")
    for r in range(64, 72): A(f"v_cvt_pk_bf16_f32 v{r+8}, v{r}, v{r}")
    for r in range(64, 72): A(f"v_and_b32 v{r+8}, 0xffff0000, v{r+8}")
    for r in range(64, 72): A(f"v_sub_f32 v{r}, v{r}, v{r+8}")
    for r in range(64, 72): A(f"v_cvt_pk_bf16_f32 v{r}, v{r+8}, v{r}")
    A("v_lshrrev_b32 v10, 1, v11")
    A("v_lshlrev_b32 v10, 7, v10")
    A("v_and_b32 v11, 1, v11")
    A("v_lshl_add_u32 v10, v11, 5, v10")
    A("s_lshl_b32 s15, s101, 9")
    A("s_lshl_b32 s27, s11, 8")
    A("s_add_u32 s15, s15, s27")
    A("s_lshr_b32 s27, s10, 1")
    A("s_lshl_b32 s27, s27, 6")
    A("s_add_u32 s15, s15, s27")
    A(f"s_add_u32 s15, s15, {CS_OFF}")
    A("s_mov_b64 exec, 15")
    A(f"buffer_store_dwordx4 v[64:67], v10, {SW}, s15 offen sc1")
    A(f"buffer_store_dwordx4 v[68:71], v10, {SW}, s15 offen offset:16 sc1")
    A("s_mov_b64 exec, -1")
    A("s_branch .L_csdone")
    A(".L_nocs:")
    A("s_lshl_b32 s15, s2, 3")
    A("s_add_u32 s15, s15, s3")
    A(f"s_cmp_lg_u32 s15, {255*8+4}")
    A("s_cbranch_scc1 .L_csdone")
    A("v_mov_b32 v10, 0")
    A(f"s_mov_b32 s15, {EP_OFF}")
    A("s_mov_b64 exec, 1")
    A(f"buffer_load_dword v11, v10, {SW}, s15 offen sc1")
    A("s_waitcnt vmcnt(0)")
    A("v_add_u32 v11, 2, v11")
    A("v_or_b32 v11, 1, v11")
    A(f"buffer_store_dword v11, v10, {SW}, s15 offen sc1")
    A(f"buffer_store_dword v11, v10, {SB}, 0 offen offset:128 sc1")
    A("s_mov_b64 exec, -1")
    A(".L_csdone:")
    stamp(A, opt, 1)
    va.all()
    A("s_barrier")
    stamp(A, opt, 2)
    work = conv_addr() + kgen(opt)
    G = sum((dd(s) for s in range(8)), []) + xres()
    nb = 0; k = 0
    for it in work:
        if it == NEXT: A("s_barrier"); nb += 1; continue
        emit(va, it); k += 1
        if G and k % 16 == 0: emitg(va, [G.pop(0)])
    assert not G and nb == 4
    va.op(f"buffer_load_dword v19, v18, {SB}, 0 offen sc1", "poll")
    poll_check(va, ".L_pa")
    emitg(va, uloads())
    for it in uwrite(): emit(va, it)
    stamp(A, opt, 3)
    A(".L_conv:")
    if opt.get("prio", 0): A(f"s_setprio {opt['prio']}")
    ZA = 64; FR = 128; U = 32
    def Freg(st, q): return FR + st * 64 + q * 4
    def Greg(st, d): return FR + st * 64 + 32 + d * 4
    def ldF(w, q):
        b = Freg(w & 1, q); pp = 4 * q + w
        return [f"ds_read_b64_tr_b16 v[{b}:{b+1}], v{VF} offset:{128*pp+32}", f"ds_read_b64_tr_b16 v[{b+2}:{b+3}], v{VF} offset:{128*pp}"]
    def ldG(w, d):
        b = Greg(w & 1, d)
        return [f"ds_read_b128 v[{b}:{b+3}], v{VG} offset:{512*d+128*(3-w)}"]
    A("s_waitcnt lgkmcnt(0)")
    A("s_cmp_eq_u32 s11, 0")
    A("s_cbranch_scc0 .L_t1")
    for ty in range(2):
        if ty: A(".L_t1:")
        tiles = [0, 3, 4, 7] if ty == 0 else [1, 2, 5, 6]
        nf = tiles[-1] + 1
        prs = [(q, at - q, ti) for ti, at in enumerate(tiles) for q in range(at + 1)]
        prs.sort(key=lambda x: (max(x[0], x[1]), x[2]))
        seq = []; rem = prs[:]
        while rem:
            k = 0
            if seq and rem[0][2] == seq[-1][2]:
                for kk in range(1, min(4, len(rem))):
                    if rem[kk][2] != seq[-1][2]: k = kk; break
            seq.append(rem.pop(k))
        def loads(w):
            L = []
            for i in range(nf): L.append((("F", i), ldF(w, i))); L.append((("G", i), ldG(w, i)))
            return L
        first = {}
        DG = sum((dd(s) for s in range(8, 16)), [])
        dstep = opt.get("dstep", 2); nm = 0
        for w in range(4):
            if w == 0:
                L = loads(0); flat = []; pos = {}
                for key, ins in L:
                    flat += ins; pos[key] = len(flat)
                issued = 0
                def pump(upto):
                    nonlocal issued
                    while issued < min(upto, len(flat)): A(flat[issued]); issued += 1
                flat = flat + sum((ins for _, ins in loads(1)), [])
                pump(12)
                for _ in range(opt.get("dpre", 2)):
                    for it in DG.pop(0): A(it if isinstance(it, str) else it[1])
            else:
                A("s_waitcnt lgkmcnt(0)")
                flat = sum((ins for _, ins in loads(w + 1)), []) if w < 3 else \
                    [f"ds_read_b32 v{U+4*p+b}, v{VX} offset:{2048*p+32*b}" for p in range(2) for b in range(4)]
                issued = 0
                if w == opt.get("wflagw", 3):
                    assert not DG
                    A("s_lshl_b32 s15, s10, 2")
                    A(f"s_add_u32 s15, s15, {FL}")
                    A("v_mov_b32 v16, s15")
                    A("v_mov_b32 v17, s29")
                    A("s_waitcnt vmcnt(0)")
                    A("ds_write_b32 v16, v17")
            waited = 0
            for n, (q, d, ti) in enumerate(seq):
                if w == 0:
                    need_ = max(pos[("F", q)], pos[("G", d)])
                    if need_ > waited:
                        pump(need_)
                        A(f"s_waitcnt lgkmcnt({min(15, issued - need_)})"); waited = need_
                c = f"v[{ZA+16*ti}:{ZA+16*ti+15}]"
                a = Freg(w & 1, q); b = Greg(w & 1, d)
                A(f"v_mfma_f32_32x32x16_bf16 {c}, v[{a}:{a+3}], v[{b}:{b+3}], {c if ti in first else '0'}")
                first[ti] = 1
                pump(issued + (3 if w == 0 else 2))
                nm += 1
                if DG and nm % dstep == 0:
                    for it in DG.pop(0): A(it if isinstance(it, str) else it[1])
            pump(len(flat))
        A("s_mov_b32 exec_lo, 0xfff0fff0")
        A("s_mov_b32 exec_hi, 0xfff0fff0")
        for ti in range(4):
            A(f"ds_write_b128 v{VH}, v[{ZA+16*ti+12}:{ZA+16*ti+15}] offset:{256*tiles[ti]+16}")
        A("s_mov_b64 exec, -1")
        A("v_add_u32 v16, 16, v16")
        A("v_xor_b32 v18, 4, v16")
        A("s_waitcnt lgkmcnt(0)")
        A("ds_write_b32 v16, v17")
        A(f"s_mov_b32 s28, {opt.get('tmo', 0x40000) * 8}")
        A(f".L_hw{ty}:")
        A("ds_read_b32 v19, v18")
        A("s_sub_u32 s28, s28, 1")
        A(f"s_cbranch_scc1 .L_hx{ty}")
        A("s_waitcnt lgkmcnt(0)")
        A("v_readfirstlane_b32 s15, v19")
        A("s_cmp_eq_u32 s15, 0")
        A(f"s_cbranch_scc1 .L_hw{ty}")
        A(f".L_hx{ty}:")
        HR = 128
        for ti in range(4):
            A(f"ds_read_b128 v[{HR+4*ti}:{HR+4*ti+3}], v{VH} offset:{256*tiles[ti]}")
        if ty == 0: A("s_branch .L_tdone")
    A(".L_tdone:")
    stamp(A, opt, 4)
    HR = 128; S = 144; O = 192
    def z(ti, i): return HR + 4 * ti + 4 + i if i < 0 else ZA + 16 * ti + i
    for ti in range(4):
        for i in range(9):
            A(f"v_add_f32_dpp v{S+12*ti+i}, v{z(ti,i+7)}, v{z(ti,i+5)} row_ror:8 row_mask:0xf bank_mask:0xc")
    for ti in range(4):
        for i in range(3, 9):
            A(f"v_add_f32_dpp v{S+12*ti+i}, v{z(ti,i-3)}, v{z(ti,i-1)} row_ror:8 row_mask:0xf bank_mask:0x3")
    A("s_waitcnt lgkmcnt(0)")
    for ti in range(4):
        for i in range(3):
            A(f"v_add_f32_dpp v{S+12*ti+i}, v{z(ti,i-3)}, v{z(ti,i-1)} row_ror:8 row_mask:0xf bank_mask:0x3")
    A("s_lshl_b32 s14, s17, 16")
    A("s_and_b32 s15, s17, 0xffff0000")
    A("s_bitcmp0_b32 s12, 0")
    A("s_cselect_b32 s14, s14, s15")
    A("s_lshl_b32 s12, s12, 12")
    A(f"s_add_u32 s12, s12, {YT_OFF}")
    for p in range(2):
        a_, b_ = S + 12 * (2 * p), S + 12 * (2 * p + 1)
        for k in range(8):
            A(f"v_add_f32_dpp v{O+8*p+k}, v{a_+k}, v{a_+k+1} row_shl:4 row_mask:0xf bank_mask:0x5")
        for k in range(8):
            A(f"v_add_f32_dpp v{O+8*p+k}, v{b_+k+1}, v{b_+k} row_shr:4 row_mask:0xf bank_mask:0xa")
    T = 64
    for p in range(2):
        for b in range(4):
            A(f"v_lshlrev_b32 v{T+8*p+b}, 16, v{U+4*p+b}")
            A(f"v_and_b32 v{T+8*p+b+4}, 0xffff0000, v{U+4*p+b}")
        for k in range(8): A(f"v_fmac_f32 v{O+8*p+k}, s14, v{T+8*p+k}")
        for k in range(4): A(f"v_cvt_pk_bf16_f32 v{80+4*p+k}, v{O+8*p+2*k}, v{O+8*p+2*k+1}")
        A(f"buffer_store_dwordx4 v[{80+4*p}:{83+4*p}], v{VY}, {SW}, s12 offen offset:{2048*p} sc1")
    A("v_and_b32 v8, 31, v1")
    A("v_lshlrev_b32 v8, 2, v8")
    A("s_lshl_b32 s14, s9, 7")
    A(f"s_add_u32 s14, s14, {FY_OFF}")
    A("v_lshrrev_b32 v9, 1, v1")
    A("v_lshlrev_b32 v9, 12, v9")
    A("v_and_b32 v10, 1, v1")
    A("v_lshl_add_u32 v9, v10, 4, v9")
    A(f"v_add_u32 v10, {32*4096}, v9")
    A("s_lshl_b32 s15, s9, 18")
    A("s_lshl_b32 s26, s8, 7")
    A("s_add_u32 s15, s15, s26")
    A("s_lshl_b32 s26, s10, 5")
    A("s_add_u32 s15, s15, s26")
    A(f"s_add_u32 s15, s15, {YT_OFF}")
    A(f"v_mov_b32 v11, {FL+36}")
    A("v_mov_b32 v12, 1")
    A("s_waitcnt vmcnt(0)")
    stamp(A, opt, 5)
    A("s_mov_b64 exec, 1")
    A("ds_add_rtn_u32 v13, v11, v12")
    A("s_waitcnt lgkmcnt(0)")
    A("v_readfirstlane_b32 s26, v13")
    A("s_cmp_lg_u32 s26, 3")
    A("s_cbranch_scc1 .L_nosig")
    A("s_lshl_b32 s26, s2, 2")
    A(f"s_add_u32 s26, s26, {FY_OFF}")
    A("v_mov_b32 v13, 0")
    A(f"buffer_store_dword v17, v13, {SW}, s26 offen sc1")
    A(".L_nosig:")
    A("s_mov_b64 exec, -1")
    A(f"s_mov_b32 s28, {opt.get('tmo', 0x40000)}")
    A(".L_poll:")
    A(f"buffer_load_dword v13, v8, {SW}, s14 offen sc1")
    A("s_sub_u32 s28, s28, 1")
    A("s_cbranch_scc1 .L_got")
    A("s_waitcnt vmcnt(0)")
    A("v_cmp_ne_u32 vcc, s29, v13")
    A("s_cbranch_vccz .L_got")
    A(f"s_sleep {opt.get('psleep', 4)}")
    A("s_branch .L_poll")
    A(".L_got:")
    A(f"buffer_load_dwordx4 v[64:67], v9, {SW}, s15 offen sc1")
    A(f"buffer_load_dwordx4 v[68:71], v10, {SW}, s15 offen sc1")
    stamp(A, opt, 6)
    A("s_lshl_b32 s26, s11, 11")
    A("s_add_u32 s26, s26, s13")
    A("v_lshl_add_u32 v11, v1, 4, s26")
    A("v_lshrrev_b32 v12, 4, v1")
    A("v_lshlrev_b32 v12, 8, v12")
    A("v_and_b32 v13, 15, v1")
    A("v_lshl_add_u32 v12, v13, 3, v12")
    A("v_add_u32 v12, s26, v12")
    A("v_lshrrev_b32 v14, 4, v1")
    A("v_lshlrev_b32 v14, 11, v14")
    A("v_lshl_add_u32 v14, v13, 4, v14")
    A("s_lshl_b32 s27, s10, 8")
    A("v_add_u32 v14, s27, v14")
    R = 96
    for q in range(8):
        A(f"v_lshlrev_b32 v{R+2*q}, 16, v{XR+q}")
        A(f"v_and_b32 v{R+2*q+1}, 0xffff0000, v{XR+q}")
    A("s_waitcnt vmcnt(0)")
    A("ds_write_b128 v11, v[64:67]")
    A("ds_write_b128 v11, v[68:71] offset:1024")
    A("s_waitcnt lgkmcnt(0)")
    for hf in range(2):
        for n in range(2):
            A(f"ds_read_b64_tr_b16 v[{72+4*hf+2*n}:{73+4*hf+2*n}], v12 offset:{hf*1024+n*128}")
    A("s_waitcnt lgkmcnt(0)")
    for q in range(8):
        A(f"v_lshlrev_b32 v{80+2*(q&3)}, 16, v{72+q}")
        A(f"v_and_b32 v{81+2*(q&3)}, 0xffff0000, v{72+q}")
        A(f"v_add_f32 v{R+2*q}, v{R+2*q}, v{80+2*(q&3)}")
        A(f"v_add_f32 v{R+2*q+1}, v{R+2*q+1}, v{81+2*(q&3)}")
        A(f"v_cvt_pk_bf16_f32 v{R+2*q+1}, v{R+2*q}, v{R+2*q+1}")
    for q in range(8):
        A(f"v_lshlrev_b32 v{R+2*q}, 16, v{R+2*q+1}")
        A(f"v_and_b32 v{R+2*q+1}, 0xffff0000, v{R+2*q+1}")
    stamp(A, opt, 7)
    A("s_barrier")
    P = 128
    for hf in range(2):
        for j in range(2):
            for q in range(4):
                b = P + (hf * 2 + j) * 16 + q * 4
                A(f"ds_read_b128 v[{b}:{b+3}], v14 offset:{q*8192 + hf*32768 + j*1024}")
    for hf in range(2):
        for j in range(2):
            n = hf * 2 + j; b = P + n * 16
            A(f"s_waitcnt lgkmcnt({12-4*n})")
            for e in range(0, 4, 2):
                A(f"v_pk_add_f32 v[{b+e}:{b+e+1}], v[{b+e}:{b+e+1}], v[{b+4+e}:{b+5+e}]")
                A(f"v_pk_add_f32 v[{b+8+e}:{b+9+e}], v[{b+8+e}:{b+9+e}], v[{b+12+e}:{b+13+e}]")
            for e in range(0, 4, 2):
                A(f"v_pk_add_f32 v[{b+e}:{b+e+1}], v[{b+e}:{b+e+1}], v[{b+8+e}:{b+9+e}]")
            for e in range(0, 4, 2):
                A(f"v_cvt_pk_bf16_f32 v{b+e+1}, v{b+e}, v{b+e+1}")
            for e in range(0, 4, 2):
                A(f"v_lshlrev_b32 v{b+e}, 16, v{b+e+1}")
                A(f"v_and_b32 v{b+e+1}, 0xffff0000, v{b+e+1}")
            for e in range(0, 4, 2):
                r = R + 4 * n + e
                A(f"v_pk_add_f32 v[{b+e}:{b+e+1}], v[{b+e}:{b+e+1}], v[{r}:{r+1}]")
            for e in range(0, 4, 2):
                A(f"v_cvt_pk_bf16_f32 v{64+2*n+e//2}, v{b+e}, v{b+e+1}")
        A(f"buffer_store_dwordx4 v[{64+4*hf}:{67+4*hf}], v{VO}, {SO}, s24 offen offset:{64*hf}")
    A("s_branch .L_fin")
    A(".L_w03:")
    A("s_getpc_b64 s[78:79]")
    A(".L_pc:")
    A("s_sub_u32 s78, s78, .L_pc-KSTART")
    A("s_subb_u32 s79, s79, 0")
    A("v_lshlrev_b32 v2, 7, v0")
    A("v_add_u32 v3, 32768, v2")
    A("v_min_u32 v3, CODE_END-KSTART, v3")
    if opt.get("codepf", 1):
        A("global_load_dword v14, v2, s[78:79]")
        A("global_load_dword v15, v3, s[78:79]")
    A("s_cmp_ge_u32 s7, 28")
    A("s_cbranch_scc1 .L_ln")
    if opt.get("gprio", 1): A(f"s_setprio {opt.get('gprio', 1)}")
    ACC = 128; WF = 64; XF = 96; CSA = 16; CSB = 32
    A("v_and_b32 v60, 31, v1")
    A("v_lshrrev_b32 v61, 5, v1")
    A("v_bfe_u32 v62, v1, 1, 3")
    A("v_xor_b32 v62, v62, v61")
    A("v_lshlrev_b32 v62, 4, v62")
    A("v_lshl_add_u32 v62, v60, 7, v62")
    A("s_lshl_b32 s10, s3, 13")
    A("v_add_u32 v2, s10, v62")
    for kp in range(1, 4): A(f"v_xor_b32 v{2+kp}, {kp*32}, v2")
    for kp in range(4): A(f"v_add_u32 v{6+kp}, 0x10000, v{2+kp}")
    A("v_lshrrev_b32 v62, 4, v1")
    A("v_lshlrev_b32 v10, 10, v62")
    A("v_bfe_u32 v63, v1, 2, 2")
    A("v_lshl_add_u32 v10, v63, 7, v10")
    A("v_and_b32 v63, 3, v1")
    A("v_lshl_add_u32 v10, v63, 3, v10")
    A("v_bfe_u32 v63, v1, 3, 2")
    A("v_lshl_add_u32 v10, v63, 5, v10")
    A(f"v_add_u32 v10, {WR}, v10")
    for tp in range(1, 4): A(f"v_xor_b32 v{10+tp}, {tp*32}, v10")
    for r in range(CSA, CSB + 8): A(f"v_mov_b32 v{r}, 0")
    A("s_lshl_b32 s11, s3, 8")
    A(f"s_add_u32 s11, s11, {STL}")
    A("v_lshl_add_u32 v48, v60, 2, s11")
    A(f"v_lshlrev_b32 v49, 2, v60")
    A(f"v_add_u32 v49, {CSL}, v49")
    A(f"v_mov_b32 v50, {FL+32}")
    A("s_mov_b32 vcc_lo, -1"); A("s_mov_b32 vcc_hi, 0")
    A("s_lshl_b32 s12, s4, 2")
    A("s_add_u32 s12, s12, s3")
    A("s_mul_i32 s12, s12, 224")
    A("s_mul_i32 s13, s5, 7")
    A("s_add_u32 s13, s13, s9")
    A("s_lshl_b32 s13, s13, 2")
    A("s_add_u32 s12, s12, s13")
    A("s_lshl_b32 s12, s12, 10")
    A(f"s_add_u32 s13, s12, {112*1024}")
    A("v_lshlrev_b32 v51, 4, v1")
    A("s_waitcnt lgkmcnt(0)")
    for x in srds(): A(x)
    lg = Cnt(A, "lgkmcnt", 15)
    def reads(s):
        i, kp, h = s >> 2, s & 3, s >> 1
        xb = XF + 8 * (s & 1); wb = WF + 16 * (s & 1)
        xa = (6 if i % 3 == 2 else 2) + kp; xo = 32768 if i % 3 == 1 else 0
        X = lambda tb: (f"ds_read_b128 v[{xb+4*tb}:{xb+4*tb+3}], v{xa} offset:{xo+tb*4096}", ("x", s, tb))
        o = (h & 3) * 8192 + (s & 1) * 4096
        W = lambda tp: [(f"ds_read_b64_tr_b16 v[{wb+4*tp}:{wb+4*tp+1}], v{10+tp} offset:{o}", ("w", s, tp)),
                        (f"ds_read_b64_tr_b16 v[{wb+4*tp+2}:{wb+4*tp+3}], v{10+tp} offset:{o+512}", ("w", s, tp))]
        return [X(0)] + W(0) + [X(1)] + W(1) + W(2) + W(3)
    stamp(A, opt, 1)
    A("s_barrier")
    stamp(A, opt, 2)
    for t, g in reads(0): lg.op(t, g)
    c1 = -2 * 0.7978845608028654 * LOG2E
    KC = 40
    for s in range(32):
        R = reads(s + 1) if s < 31 else []
        extra = []
        if s == 29:
            R += [(f"ds_read_b32 v{52+tb}, v48 offset:{tb*128}", "st") for tb in range(2)]
        if s == 30:
            R += [(f"ds_read_b32 v{CSA+4*tp}, v49 offset:{tp*128}", "cs") for tp in range(4)] + [("ds_read_b32 v54, v50 offset:8", "cs")]
        if s == 31:
            for tb in range(2):
                k = KC + 4 * tb; d = 52 + tb
                extra += [f"v_and_b32 v{k+2}, 0xffff0000, v{d}", f"v_and_b32 v{d}, 0xffff, v{d}", f"v_rcp_f32 v{k+1}, v{k+2}", f"v_lshl_or_b32 v{d}, v{d}, 16, v{d}",
                          f"v_mul_f32 v{k+2}, v{k+2}, v{k+2}", f"v_cndmask_b32 v{CSB+4*tb}, 0, v{d}, vcc", f"v_mul_f32 v{k}, {fhex(c1)}, v{k+1}", f"v_mul_f32 v{k+1}, v{k+1}, v{k+1}",
                          f"v_mul_f32 v{k+1}, {fhex(0.044715)}, v{k+1}", f"v_mul_f32 v{k+1}, v{k}, v{k+1}"]
        bar = s & 1
        for n in range(8):
            tp, tb = n >> 1, n & 1
            lg.wait(("x", s, tb), ("w", s, tp))
            c = f"v[{ACC+64*tb+16*tp}:{ACC+64*tb+16*tp+15}]"
            a = WF + 16 * (s & 1) + 4 * tp; b = XF + 8 * (s & 1) + 4 * tb
            A(f"v_mfma_f32_32x32x16_bf16 {c}, v[{a}:{a+3}], v[{b}:{b+3}], {'0' if s == 0 else c}")
            if bar and n == 0:
                lg.all(); A("s_barrier")
                if s == 15: stamp(A, opt, 3)
            for _ in range(2 if len(R) <= 2 * (7 - n) else 3):
                if R: lg.op(*R.pop(0))
            for _ in range(3):
                if extra: A(extra.pop(0))
    assert not R and not extra
    for n in range(8):
        tb, tp = n >> 2, n & 3
        c = f"v[{ACC+64*tb+16*tp}:{ACC+64*tb+16*tp+15}]"
        A(f"v_mfma_f32_32x32x16_bf16 {c}, v[{CSA+4*tp}:{CSA+4*tp+3}], v[{CSB+4*tb}:{CSB+4*tb+3}], {c}")
    stamp(A, opt, 4)
    for n in range(8):
        tb, tp = n >> 2, n & 3
        g = lambda e: ACC + 64 * tb + 16 * tp + e
        u = lambda e: g(e) + 8
        T = 64 + (n & 1) * 16; k = KC + 4 * tb
        if opt.get("pk"):
            pr = lambda r: f"v[{r}:{r+1}]"
            for e in range(0, 8, 2): A(f"v_pk_mul_f32 {pr(T+e)}, {pr(g(e))}, {pr(g(e))}")
            for e in range(0, 8, 2): A(f"v_pk_fma_f32 {pr(T+e)}, {pr(T+e)}, {pr(k)}, {pr(k)} op_sel:[0,1,0] op_sel_hi:[1,1,0]")
            for e in range(0, 8, 2): A(f"v_pk_mul_f32 {pr(T+e)}, {pr(T+e)}, {pr(g(e))}")
            for e in range(0, 8, 2):
                A(f"v_exp_f32 v{T+e}, v{T+e}"); A(f"v_exp_f32 v{T+e+1}, v{T+e+1}")
                A(f"v_pk_mul_f32 {pr(g(e))}, {pr(g(e))}, {pr(u(e))}")
            for e in range(0, 8, 2): A(f"v_pk_fma_f32 {pr(T+e)}, {pr(T+e)}, {pr(k+2)}, {pr(k+2)} op_sel:[0,0,0] op_sel_hi:[1,0,0]")
            for e in range(8): A(f"v_rcp_f32 v{T+e}, v{T+e}")
            for e in range(0, 8, 2): A(f"v_pk_mul_f32 {pr(g(e))}, {pr(g(e))}, {pr(T+e)}")
        else:
            for e in range(8): A(f"v_mul_f32 v{T+e}, v{g(e)}, v{g(e)}")
            for e in range(8): A(f"v_fma_f32 v{T+e}, v{T+e}, v{k+1}, v{k}")
            for e in range(8): A(f"v_mul_f32 v{T+e}, v{T+e}, v{g(e)}")
            for e in range(8):
                A(f"v_exp_f32 v{T+e}, v{T+e}")
                A(f"v_mul_f32 v{g(e)}, v{g(e)}, v{u(e)}")
            for e in range(8): A(f"v_fma_f32 v{T+e}, v{T+e}, v{k+2}, v{k+2}")
            for e in range(8): A(f"v_rcp_f32 v{T+e}, v{T+e}")
            for e in range(8): A(f"v_mul_f32 v{g(e)}, v{g(e)}, v{T+e}")
        for q in range(4): A(f"v_cvt_pk_bf16_f32 v{T+8+q}, v{g(2*q)}, v{g(2*q+1)}")
        A(f"buffer_store_dwordx4 v[{T+8}:{T+11}], v51, {SW}, s{12+tb} offen offset:{tp*1024} sc1")
    A("v_mov_b32 v52, 1")
    A("s_lshl_b32 s12, s4, 2")
    A("s_add_u32 s12, s12, s5")
    A("s_lshl_b32 s12, s12, 5")
    A("s_add_u32 s12, s12, s9")
    A("s_lshl_b32 s12, s12, 2")
    A(f"s_add_u32 s12, s12, {FH_OFF}")
    stamp(A, opt, 5)
    A("s_waitcnt vmcnt(0)")
    A("s_mov_b64 exec, 1")
    A("ds_add_rtn_u32 v53, v50, v52")
    A("s_waitcnt lgkmcnt(0)")
    A("v_readfirstlane_b32 s13, v53")
    A("s_cmp_lg_u32 s13, 3")
    A("s_cbranch_scc1 .L_nohs")
    A("v_mov_b32 v53, 0")
    A(f"buffer_store_dword v54, v53, {SW}, s12 offen sc1")
    A(".L_nohs:")
    A("s_mov_b64 exec, -1")
    A("s_branch .L_g2")
    A(".L_ln:")
    A("v_lshrrev_b32 v8, 3, v1")
    A("v_and_b32 v9, 7, v1")
    A("v_lshlrev_b32 v10, 12, v8")
    A("v_lshl_add_u32 v10, v9, 4, v10")
    A("s_lshl_b32 s10, s8, 16")
    A("s_lshl_b32 s11, s3, 10")
    A("s_add_u32 s10, s10, s11")
    A("s_add_u32 s11, s10, 32768")
    A("s_mov_b32 s50, 0x200000"); A("s_mov_b32 s51, 0x20000")
    A("s_waitcnt lgkmcnt(0)")
    A("s_mov_b64 s[48:49], s[16:17]")
    X = 128
    for th in range(2):
        for q in range(8): A(f"buffer_load_dwordx4 v[{X+32*th+4*q}:{X+32*th+4*q+3}], v10, {SX}, s{10+th} offen offset:{q*128}")
    for x in srds(): A(x)
    RS = 1056
    A(f"s_mul_i32 s12, s3, {16*RS}")
    A(f"v_mul_u32_u24 v11, {2*RS}, v8")
    A("v_lshl_add_u32 v11, v9, 4, v11")
    A("v_add_u32 v11, s12, v11")
    A("v_bfe_u32 v12, v1, 2, 2")
    A("v_and_b32 v13, 1, v1")
    A("v_lshl_add_u32 v12, v12, 1, v13")
    A(f"v_mul_u32_u24 v12, {RS}, v12")
    A("v_lshrrev_b32 v13, 4, v1")
    A("v_lshl_add_u32 v12, v13, 4, v12")
    A("v_bfe_u32 v13, v1, 1, 1")
    A("v_lshl_add_u32 v12, v13, 3, v12")
    A("v_add_u32 v12, s12, v12")
    A("v_lshlrev_b32 v13, 4, v8")
    A("s_lshl_b32 s13, s8, 8")
    A("s_lshl_b32 s14, s3, 2")
    A("s_add_u32 s13, s13, s14")
    A(f"s_add_u32 s13, s13, {ST_OFF}")
    A("s_mov_b32 s14, 0x3f803f80")
    def red8(r):
        A(f"v_add_f32_dpp v{r}, v{r}, v{r} quad_perm:[1,0,3,2] row_mask:0xf bank_mask:0xf")
        A(f"v_add_f32_dpp v{r}, v{r}, v{r} quad_perm:[2,3,0,1] row_mask:0xf bank_mask:0xf")
        A(f"v_add_f32_dpp v{r}, v{r}, v{r} row_half_mirror row_mask:0xf bank_mask:0xf")
    stamp(A, opt, 1)
    for th in range(2):
        Xb = X + 32 * th; F = 64 if th == 0 else 192
        for r in range(16, 22): A(f"v_mov_b32 v{r}, 0")
        for q in range(32):
            if q % 4 == 0: A(f"s_waitcnt vmcnt({(15 if th == 0 else 8) - q // 4})")
            A(f"v_dot2c_f32_bf16 v{16+(q&1)}, s14, v{Xb+q}")
            A(f"v_lshlrev_b32 v{F+2*q}, 16, v{Xb+q}")
            A(f"v_and_b32 v{F+2*q+1}, 0xffff0000, v{Xb+q}")
        if th == 0: stamp(A, opt, 2)
        A("v_add_f32 v16, v16, v17")
        red8(16)
        A(f"v_mul_f32 v16, {fhex(-1/512)}, v16")
        for q in range(32):
            A(f"v_pk_add_f32 v[{F+2*q}:{F+2*q+1}], v[{F+2*q}:{F+2*q+1}], v[16:17] op_sel_hi:[1,0]")
        for q in range(32):
            a = 18 + 2 * (q & 1)
            A(f"v_pk_fma_f32 v[{a}:{a+1}], v[{F+2*q}:{F+2*q+1}], v[{F+2*q}:{F+2*q+1}], v[{a}:{a+1}]")
        A("v_pk_add_f32 v[18:19], v[18:19], v[20:21]")
        A("v_cvt_pk_bf16_f32 v17, v16, v16")
        A("v_add_f32 v18, v18, v19")
        red8(18)
        A(f"v_mul_f32 v18, {fhex(1/512)}, v18")
        A("v_cvt_pk_bf16_f32 v18, v18, v18")
        A("v_and_b32 v18, 0xffff0000, v18")
        A(f"v_add_f32 v18, {fhex(1e-5)}, v18")
        A("v_cvt_pk_bf16_f32 v18, v18, v18")
        A("v_and_b32 v18, 0xffff0000, v18")
        A("v_sqrt_f32 v18, v18")
        A("v_and_b32 v19, 0xffff0000, v17")
        A("v_cvt_pk_bf16_f32 v18, v19, v18")
        A("v_sub_f32 v19, v19, v16")
        A("v_and_b32 v20, 0xffff0000, v18")
        A("v_rcp_f32 v20, v20")
        A("s_mov_b32 exec_lo, 0x01010101"); A("s_mov_b32 exec_hi, 0x01010101")
        A(f"buffer_store_dword v18, v13, {SW}, s13 offen offset:{th*128} sc1")
        A("s_mov_b64 exec, -1")
        A("v_mul_f32 v21, v19, v20")
        for q in range(32):
            A(f"v_pk_fma_f32 v[{F+2*q}:{F+2*q+1}], v[{F+2*q}:{F+2*q+1}], v[20:21], v[20:21] op_sel:[0,0,1] op_sel_hi:[1,0,1]")
        for q in range(32):
            A(f"v_cvt_pk_bf16_f32 v{Xb+q}, v{F+2*q}, v{F+2*q+1}")
            if q & 3 == 3: A(f"ds_write_b128 v11, v[{Xb+q-3}:{Xb+q}] offset:{th*RS+(q>>2)*128}")
    A("v_lshlrev_b32 v13, 4, v1")
    A("s_lshl_b32 s13, s8, 16")
    A("s_lshl_b32 s14, s3, 14")
    A("s_add_u32 s13, s13, s14")
    A(f"s_add_u32 s13, s13, {XND_OFF}")
    A("s_waitcnt lgkmcnt(0)")
    stamp(A, opt, 3)
    def trd(blk):
        b = 64 + 4 * blk
        A(f"ds_read_b64_tr_b16 v[{b}:{b+1}], v12 offset:{blk*64}")
        A(f"ds_read_b64_tr_b16 v[{b+2}:{b+3}], v12 offset:{blk*64+8*RS}")
    for blk in range(6): trd(blk)
    for blk in range(16):
        if blk + 6 < 16: trd(blk + 6)
        A(f"s_waitcnt lgkmcnt({2*min(6, 15-blk)})")
        A(f"buffer_store_dwordx4 v[{64+4*blk}:{67+4*blk}], v13, {SW}, s13 offen offset:{(blk&3)*1024} sc1")
        if blk & 3 == 3: A("s_add_u32 s13, s13, 4096")
    A("s_waitcnt vmcnt(0)")
    stamp(A, opt, 4)
    A("s_barrier")
    A("s_cmp_lg_u32 s3, 0")
    A("s_cbranch_scc1 .L_noaf")
    A("s_lshl_b32 s13, s8, 2")
    A("v_mov_b32 v13, 0")
    A("v_mov_b32 v16, 1")
    A("s_mov_b64 exec, 1")
    A(f"buffer_store_dword v16, v13, {SB}, s13 offen sc1")
    A("s_mov_b64 exec, -1")
    A(".L_noaf:")
    pf = opt.get("wdpf", 128)
    if pf:
        A(f"v_mul_u32_u24 v13, {pf}, v1")
        A("s_lshl_b32 s13, s3, 2")
        A("s_and_b32 s14, s7, 3")
        A("s_add_u32 s13, s13, s14")
        A(f"s_mul_i32 s13, s13, {112*1024}")
        for it in range(112 * 1024 // (64 * pf)):
            A(f"buffer_load_dword v16, v13, {SD}, s13 offen{opt.get('pfflag', '')}")
            A(f"s_add_u32 s13, s13, {64*pf}")
    for _ in range(4): A("s_barrier")
    A("s_waitcnt vmcnt(0)")
    stamp(A, opt, 5)
    A(".L_g2:")
    ACC = 64; HF = 128; WF = 32; DH = opt.get("DH", 16)
    hld = opt.get("hld", " sc1")
    A("s_lshl_b32 s14, s3, 2")
    A(f"s_add_u32 s14, s14, {FL}")
    A("v_mov_b32 v16, s14")
    A("v_lshlrev_b32 v2, 4, v1")
    A(f"v_add_u32 v3, {112*1024}, v2")
    A("v_lshrrev_b32 v8, 3, v1")
    A("v_and_b32 v9, 7, v1")
    A("v_bfe_u32 v10, v1, 4, 1")
    A("v_lshlrev_b32 v10, 2, v10")
    A("v_xor_b32 v9, v9, v10")
    A("v_lshlrev_b32 v9, 4, v9")
    A("v_lshl_add_u32 v4, v8, 10, v9")
    A("v_add_u32 v5, 7168, v4")
    A("s_mul_i32 s11, s3, 28")
    A("s_mul_i32 s12, s8, 224")
    A("s_add_u32 s12, s12, s11")
    A("s_lshl_b32 s12, s12, 10")
    A("s_lshl_b32 s13, s11, 14")
    A("s_lshl_b32 s14, s9, 7")
    A("s_add_u32 s13, s13, s14")
    A(f"s_add_u32 s13, s13, {15*16384}")
    A("s_lshl_b32 s15, s3, 13")
    A("v_lshrrev_b32 v8, 5, v1")
    A("v_bfe_u32 v9, v1, 2, 2")
    A("v_lshl_add_u32 v8, v8, 2, v9")
    A("v_lshlrev_b32 v8, 7, v8")
    A("v_bfe_u32 v9, v1, 4, 1")
    A("v_lshl_add_u32 v8, v9, 5, v8")
    A("v_and_b32 v9, 3, v1")
    A("v_lshl_add_u32 v8, v9, 3, v8")
    A("v_bfe_u32 v9, v1, 3, 1")
    A("v_lshl_add_u32 v8, v9, 6, v8")
    A("v_add_u32 v6, s15, v8")
    A("v_xor_b32 v7, 64, v6")
    A("v_add_u32 v8, 0x10000, v6")
    A("v_add_u32 v9, 0x10000, v7")
    A("v_min_u32 v10, 6, v1")
    A("v_lshlrev_b32 v10, 2, v10")
    A("s_lshr_b32 s14, s8, 2")
    A("s_lshl_b32 s14, s14, 2")
    A("s_add_u32 s14, s14, s3")
    A("s_lshl_b32 s14, s14, 7")
    A(f"s_add_u32 s14, s14, {FH_OFF}")
    A(f"s_mov_b32 s28, {opt.get('tmo', 0x40000) * 8}")
    A(".L_wf:")
    A("ds_read_b32 v17, v16")
    A("s_sub_u32 s28, s28, 1")
    A("s_cbranch_scc1 .L_wfx")
    A("s_waitcnt lgkmcnt(0)")
    A("v_readfirstlane_b32 s29, v17")
    A("s_cmp_eq_u32 s29, 0")
    A("s_cbranch_scc0 .L_wfx")
    A("s_sleep 1")
    A("s_branch .L_wf")
    A(".L_wfx:")
    stamp(A, opt, 6)
    def trW(s):
        b = WF + (s & 1) * 8
        o = RREG[(s & 15) >> 2] + (s & 3) * 2048
        base = 8 if o >= 65536 else 6; o &= 65535
        for cb in range(2):
            A(f"ds_read_b64_tr_b16 v[{b+4*cb}:{b+4*cb+1}], v{base+cb} offset:{o}")
            A(f"ds_read_b64_tr_b16 v[{b+4*cb+2}:{b+4*cb+3}], v{base+cb} offset:{o+1024}")
    trW(0)
    A(f"s_mov_b32 s28, {opt.get('tmo', 0x40000)}")
    A(".L_hp:")
    A(f"buffer_load_dword v17, v10, {SW}, s14 offen sc1")
    A("s_sub_u32 s28, s28, 1")
    A("s_cbranch_scc1 .L_hpx")
    A("s_waitcnt vmcnt(0)")
    A("v_cmp_ne_u32 vcc, s29, v17")
    A("s_cbranch_vccz .L_hpx")
    A(f"s_sleep {opt.get('hsleep', 1)}")
    A("s_branch .L_hp")
    A(".L_hpx:")
    stamp(A, opt, 7)
    v2 = Cnt(A, "vmcnt", 63)
    def ldH(s, th):
        if th == 0 and s and s % 4 == 0: A("s_add_u32 s12, s12, 4096")
        b = HF + (s % DH) * 8 + th * 4
        v2.op(f"buffer_load_dwordx4 v[{b}:{b+3}], v{2+th}, {SW}, s12 offen offset:{(s % 4) * 1024}{hld}", ("h", s, th))
    def dmaW(s, part):
        if part == 0:
            A(f"s_add_u32 m0, s15, {RREG[(s & 15) >> 2] + (s & 3) * 2048}")
            A("s_add_u32 s13, s13, 16384")
            v2.op(f"buffer_load_dwordx4 v4, {SD}, s13 offen lds{wld}", ("d", s))
        else:
            v2.op(f"buffer_load_dwordx4 v5, {SD}, s13 offen offset:1024 lds{wld}", ("d", s))
    for s in range(DH): ldH(s, 0); ldH(s, 1)
    NS = 28
    for s in range(NS):
        if s + 1 < NS:
            if s + 1 >= 16: v2.wait(("d", s + 1))
            trW(s + 1)
            A("s_waitcnt lgkmcnt(4)")
        else:
            A("s_waitcnt lgkmcnt(0)")
        nx = s + DH < NS; nw = s + 16 < NS
        def M(cb, th):
            c = f"v[{ACC+16*(2*th+cb)}:{ACC+16*(2*th+cb)+15}]"
            a = WF + (s & 1) * 8 + 4 * cb; b = HF + (s % DH) * 8 + th * 4
            A(f"v_mfma_f32_32x32x16_bf16 {c}, v[{a}:{a+3}], v[{b}:{b+3}], {'0' if s == 0 else c}")
        if nw: dmaW(s + 16, 0); dmaW(s + 16, 1)
        v2.wait(("h", s, 0))
        if s == 0: stamp(A, opt, 8)
        M(0, 0)
        M(1, 0)
        if nx: ldH(s + DH, 0)
        v2.wait(("h", s, 1))
        M(0, 1)
        M(1, 1)
        if nx: ldH(s + DH, 1)
    stamp(A, opt, 9)
    A("v_lshrrev_b32 v8, 5, v1")
    A("v_lshlrev_b32 v8, 10, v8")
    A("v_and_b32 v9, 31, v1")
    A("v_lshl_add_u32 v8, v9, 4, v8")
    A("v_add_u32 v8, s15, v8")
    for th in range(2):
        for cb in range(2):
            for rq in range(4):
                b = ACC + 16 * (2 * th + cb) + 4 * rq
                A(f"ds_write_b128 v8, v[{b}:{b+3}] offset:{cb*32768 + 2*rq*1024 + th*512}")
    A("s_waitcnt lgkmcnt(0)")
    A("s_barrier")
    A(".L_fin:")
    if opt.get("stamps"):
        A("s_waitcnt vmcnt(0)")
        A("s_memtime s[100:101]")
        A("s_memrealtime s[78:79]")
        A("s_waitcnt lgkmcnt(0)")
        for q in range(1, 11): A(f"s_sub_u32 s{80+2*q}, s{80+2*q}, s80")
        A("v_mov_b32 v64, s76"); A("v_mov_b32 v65, s78")
        for q in range(1, 11): A(f"v_mov_b32 v{65+q}, s{80+2*q}")
        A("s_lshl_b32 s14, s2, 3"); A("s_add_u32 s14, s14, s3"); A("s_lshl_b32 s14, s14, 6")
        A(f"s_add_u32 s14, s14, {STAMP_OFF}")
        A("v_mov_b32 v62, 0")
        A("s_mov_b64 exec, 1")
        for q in range(3): A(f"buffer_store_dwordx4 v[{64+4*q}:{67+4*q}], v62, {SW}, s14 offen offset:{16*q}")
    A(".L_end:")
    A("s_endpgm")
    return A.L

P = "parallel_sum__ssm_conv_s4__geglu_ffn__prompt"
def build(opt, fn):
    l, n = fix_hazards(gen_kf(opt), opt.get("verbose"))
    hdr = open("cdna_kernels/" + P + ".s.ref").read().split("; Override launch")[0]
    s = hdr + f"; @launch grid=(256,1,1) block=(512,1,1) lds={LDS_F}\n"
    s += '.amdgcn_target "amdgcn-amd-amdhsa--gfx950"\n'
    s += kernel_text(P + "_kernel", ["KSTART:"] + l, 256, 256)
    s += "CODE_END:\n    s_endpgm\n"
    s += kernel_desc(P + "_kernel", 256, 256)
    open(fn, "w").write(s)
    return n
if __name__ == "__main__":
    import sys, json
    opt = json.loads(sys.argv[2]) if len(sys.argv) > 2 else {}
    print("nops", build(opt, sys.argv[1]))
```

```python
import math
from fw import *

H_OFF = 0x0
XND_OFF = 0x800000
ST_OFF = 0xA00000
CS_OFF = 0xA10000
YT_OFF = 0xC00000
FH_OFF = 0xEC0000
FY_OFF = 0xED0000
EP_OFF = 0xEE0000
STAMP_OFF = 0xF00000
KD_OFF = 0x1000000
WS_SIZE = 0x1200000

LOG2E = 1.4426950408889634
def split_hi(c, bits):
    m, e = math.frexp(c); hi = math.ldexp(round(m * (1 << bits)), e - bits); return hi, c - hi

WR = 98304
CB = 131072; CH = 16384
KSZ, USZ, HSZ = 4160, 4608, 3 * 129 * 16
STL = CB + 14976
FL = CB + 16128
TB = 6656
CSL = CB + CH + 14976
RREG = [65536, 0, 98304, 32768]
LDS_F = 163840
SX, SG, SU, SD, SO, SW, SB = "s[48:51]", "s[52:55]", "s[56:59]", "s[60:63]", "s[64:67]", "s[68:71]", "s[72:75]"

class Cnt:
    def __init__(s, A, name, mx): s.A = A; s.q = []; s.done = -1; s.name = name; s.mx = mx
    def op(s, text, tag=None): s.A(text); s.q.append(tag)
    def wait(s, *tags):
        idx = max(i for i, t in enumerate(s.q) if t in tags)
        if idx > s.done:
            n = len(s.q) - 1 - idx
            s.A(f"s_waitcnt {s.name}({min(n, s.mx)})")
            s.done = idx if n <= s.mx else len(s.q) - 1 - s.mx
    def all(s):
        s.A(f"s_waitcnt {s.name}(0)"); s.done = len(s.q) - 1

def stamp(A, opt, idx, st=1):
    if opt.get("stamps") and (idx == 0 or opt.get("stamps") == st): A(f"s_memtime s[{80+2*idx}:{81+2*idx}]")

def bstamp(A, opt, h, after):
    h0 = opt.get("sb", 8)
    if opt.get("stamps") == 5 and h0 <= h < h0 + 5:
        idx = 2 * (h - h0) + after
        if 1 <= idx <= 9: A(f"s_memtime s[{80+2*idx}:{81+2*idx}]")

def cmul(L, d, x, e):
    L.append(f"v_mul_f32 v{d}, v{x}, v{e}")
    L.append(f"v_mul_f32 v{d+1}, v{x}, v{e+1}")
    L.append(f"v_fma_f32 v{d}, -v{x+1}, v{e+1}, v{d}")
    L.append(f"v_fmac_f32 v{d+1}, v{x+1}, v{e}")

def tab_waddr(base, sreg):
    L = ["v_and_b32 v60, 7, v1", "v_lshlrev_b32 v60, 4, v60", "v_lshl_add_u32 v60, v1, 7, v60", f"v_add_u32 v{base}, {sreg}, v60"]
    for j in range(1, 8): L.append(f"v_xor_b32 v{base+j}, {j<<4}, v{base}")
    return L
def kgen_addr():
    L = tab_waddr(44, "s14")
    L.append("v_lshrrev_b32 v60, 5, v1")
    L.append("v_bfe_u32 v61, v1, 3, 1")
    L.append("v_lshl_add_u32 v60, v60, 2, v61")
    L.append("v_bfe_u32 v61, v1, 2, 1")
    L.append("v_bfe_u32 v62, v1, 4, 1")
    L.append("v_lshl_add_u32 v61, v61, 1, v62")
    L.append("v_bfe_u32 v62, v1, 1, 1")
    L.append("v_lshl_add_u32 v61, v61, 1, v62")
    L.append("v_xor_b32 v61, v61, v60")
    L.append("v_lshlrev_b32 v61, 4, v61")
    L.append("v_lshl_add_u32 v61, v60, 7, v61")
    L.append("v_and_b32 v62, 1, v1")
    L.append("v_lshl_add_u32 v61, v62, 3, v61")
    L.append("v_add_u32 v52, s14, v61")
    L.append("v_xor_b32 v53, 32, v52")
    L.append("v_add_u32 v54, s15, v61")
    L.append("v_xor_b32 v55, 32, v54")
    return L

def k_dt(src):
    chi, clo = split_hi(LOG2E, 16)
    return [f"v_mul_f32 v64, {fhex(chi)}, v{src}", "v_rndne_f32 v65, v64", "v_sub_f32 v64, v64, v65", f"v_fmac_f32 v64, {fhex(clo)}, v{src}",
            "v_exp_f32 v64, v64", "v_cvt_i32_f32 v65, v65", "v_ldexp_f32 v64, v64, v65", "v_cvt_pk_bf16_f32 v64, v64, v64", "v_lshlrev_b32 v64, 16, v64"]
def k_scale(p):
    return [f"v_mul_f32 v{p}, v64, v{p}", f"v_mul_f32 v{p+1}, v64, v{p+1}", f"v_mul_f32 v{p}, {fhex(LOG2E)}, v{p}", f"v_mul_f32 v{p+1}, {fhex(1/(2*math.pi))}, v{p+1}"]
def k_direct(L, p, d, pos, t):
    if pos == 1:
        L.append(f"v_exp_f32 v{t}, v{p}"); L.append(f"v_fract_f32 v{t+1}, v{p+1}")
    else:
        L.append(f"v_mul_f32 v{t}, {fhex(float(pos))}, v{p}"); L.append(f"v_mul_f32 v{t+1}, {fhex(float(pos))}, v{p+1}")
        L.append(f"v_exp_f32 v{t}, v{t}"); L.append(f"v_fract_f32 v{t+1}, v{t+1}")
    L.append(f"v_cos_f32 v{d}, v{t+1}"); L.append(f"v_sin_f32 v{d+1}, v{t+1}")
    L.append(f"v_mul_f32 v{d}, v{d}, v{t}"); L.append(f"v_mul_f32 v{d+1}, v{d+1}, v{t}")
STG = 208
def k_rd(base, ar, off=0):
    L = []
    for ks in range(8):
        L.append(f"ds_read_b64_tr_b16 v[{base+4*ks}:{base+4*ks+1}], v{ar} offset:{off+ks*1024}")
        L.append(f"ds_read_b64_tr_b16 v[{base+4*ks+2}:{base+4*ks+3}], v{ar+1} offset:{off+ks*1024+256}")
    return L
def k_wr(L, wa, q):
    t = STG + 8 * (q & 1)
    L.append(f"ds_write_b128 v{wa+q}, v[{t}:{t+3}]"); L.append(f"ds_write_b128 v{wa+4+q}, v[{t+4}:{t+7}]")
def kgen_x(p, wa):
    L = k_dt(p + 6) + k_scale(p)
    L.append(f"v_mul_f32 v66, v64, v{p+2}"); L.append(f"v_mul_f32 v67, v64, v{p+3}")
    k_direct(L, p, 70, 8, 72)
    cmul(L, 74, p + 4, 66)
    cmul(L, 72, 70, 70)
    cmul(L, 76, 74, 70)
    cur = [74, 76]; nxt = [78, 80]
    for i in range(0, 32, 2):
        if i + 2 < 32:
            cmul(L, nxt[0], cur[0], 72); cmul(L, nxt[1], cur[1], 72)
        t = STG + 8 * ((i >> 3) & 1) + ((i >> 1) & 3)
        L.append(f"v_cvt_pk_bf16_f32 v{t}, v{cur[0]}, v{cur[1]}")
        L.append(f"v_cvt_pk_bf16_f32 v{t+4}, v{cur[0]+1}, v{cur[1]+1}")
        if i & 7 == 6: k_wr(L, wa, i >> 3)
        cur, nxt = nxt, cur
    return L
def kgen_y(p):
    L = k_scale(p)
    lay = {0: [0,1,2,3,4,5,6,7,512,516,520,1024,1032,1536,1544,1544], 1: [256,256,258,260,260,260,262,264,768,772,776,1280,1288,1792,1800,1800]}
    pairs = [(q, k, (lay[k >> 1][4*q + 2*(k & 1)], lay[k >> 1][4*q + 2*(k & 1) + 1])) for q in range(4) for k in range(4)]
    reg = {}; nreg = [66]
    def new(q):
        reg[q] = nreg[0]; nreg[0] += 2; return reg[q]
    k_direct(L, p, new(1), 1, 124)
    k_direct(L, p, new(256), 256, 126)
    plan = [(2,1,1),(512,256,256),(3,2,1),(4,2,2),(258,256,2),(768,512,256),(260,256,4),(5,4,1),(6,4,2),(8,4,4),(7,4,3),(1024,512,512),(262,256,6),(264,256,8),
            (516,512,4),(520,512,8),(772,768,4),(776,768,8),(1280,1024,256),(1536,1024,512),(1032,1024,8),(1792,1024,768),(1288,1280,8),(1544,1536,8),(1800,1792,8)]
    def flush(avail, mx):
        n = 0
        while pairs and n < mx and all(z == 0 or z in avail for z in pairs[0][2]):
            q, k, (a, b) = pairs.pop(0)
            t = STG + 8 * (q & 1) + k
            L.append(f"v_cvt_pk_bf16_f32 v{t}, {'1.0' if a == 0 else 'v%d' % reg[a]}, v{reg[b]}")
            L.append(f"v_cvt_pk_bf16_f32 v{t+4}, {'0' if a == 0 else '-v%d' % (reg[a]+1)}, -v{reg[b]+1}")
            if k == 3: k_wr(L, 44, q)
            n += 1
    for n, (q, a, b) in enumerate(plan):
        assert a + b == q
        av = set(reg)
        cmul(L, new(q), reg[a], reg[b])
        flush(av, 1)
    flush(set(reg), 99)
    assert nreg[0] <= 124 and not pairs
    return L
XF0, XF1, YF0, YF1 = 128, 224, 160, 68
def k_zero():
    return ["v_lshlrev_b32 v60, 4, v1", f"v_add_u32 v61, {KSZ}, v60", "v_subrev_u32 v63, 512, v60", "v_cmp_gt_u32 vcc, 32, v1", "v_mov_b32 v64, 0", "v_mov_b32 v65, 0", "v_cndmask_b32 v61, v63, v61, vcc",
         "v_subrev_u32 v63, 36, v1", "v_min_u32 v63, 2, v63", f"v_mul_u32_u24 v63, {129*16}, v63", "v_cmp_gt_u32 vcc, 36, v1", f"v_add_u32 v63, {KSZ+USZ}, v63", "v_mov_b32 v66, 0",
         "v_cndmask_b32 v61, v63, v61, vcc", "v_add_u32 v61, s13, v61", "v_and_b32 v62, 1, v1", "v_cmp_eq_u32 vcc, 0, v62", "v_add_u32 v63, s13, v60", "v_mov_b32 v67, 0",
         "ds_write_b128 v61, v[64:67]"]
def k_mf(hf):
    x, y = ((XF0, YF0), (XF1, YF1))[hf]
    return [f"v_mfma_f32_32x32x16_bf16 v[192:207], v[{y+4*ks}:{y+3+4*ks}], v[{x+4*ks}:{x+3+4*ks}], {'0' if ks == 0 and hf == 0 else 'v[192:207]'}" for ks in range(8)]
def k_tail(opt):
    L = []
    a = lambda r: f"v{192+r}"
    pk = lambda d, lo, hi: L.append(f"v_cvt_pk_bf16_f32 v{d}, {lo}, {hi}")
    wr = lambda q: L.append(f"ds_write_b128 v63, v[{104+4*q}:{107+4*q}] offset:{64+1024*q}")
    pk(104, a(0), a(1)); pk(105, a(2), a(3)); pk(106, a(4), a(5)); pk(107, a(6), a(7)); wr(0)
    pk(108, a(8), a(8)); pk(109, a(8), a(9)); pk(110, a(9), a(9)); pk(111, a(10), a(10)); wr(1)
    for (z, b) in ((11, 112), (13, 116)):
        L.append(f"v_cndmask_b32 v62, {a(z+1)}, {a(z)}, vcc")
        pk(b, a(z), a(z)); L.append(f"v_mov_b32 v{b+1}, v{b}"); pk(b+2, "v62", a(z+1)); pk(b+3, a(z+1), a(z+1)); wr((b - 104) // 4)
    if opt.get("kdump"):
        L.append("s_lshl_b32 s15, s12, 12")
        L.append(f"s_add_u32 s15, s15, {KD_OFF}")
        for q in range(4): L.append(f"buffer_store_dwordx4 v[{104+4*q}:{107+4*q}], v60, {SW}, s15 offen offset:{1024*q}")
    return L
def rot_phase(dst, sh):
    return [f"s_lshl_b32 {dst}, s7, 1", f"s_add_u32 {dst}, {dst}, s9", f"s_and_b32 {dst}, {dst}, 7", f"s_mul_i32 {dst}, {dst}, 7", f"s_lshr_b32 {dst}, {dst}, 1", f"s_lshl_b32 {dst}, {dst}, {sh}"]
def rot_off(dst, tmp, r, s, sh, on=True):
    if not on: return [f"s_mov_b32 {dst}, {s << sh}"]
    return [f"s_add_u32 {dst}, {r}, {s << sh}", f"s_sub_u32 {tmp}, {r}, {(28 - s) << sh}", f"s_min_u32 {dst}, {dst}, {tmp}"]

VF, VG, VH, VX, VY, VO = 10, 11, 12, 13, 14, 15
XR = 24; UD = 232
def conv_addr():
    L = []; A = L.append
    A("v_lshrrev_b32 v16, 5, v1")
    A(f"v_lshlrev_b32 v{VF}, 6, v16")
    A("v_and_b32 v17, 1, v1")
    A(f"v_lshl_add_u32 v{VF}, v17, 5, v{VF}")
    A("v_bfe_u32 v17, v1, 4, 1")
    A(f"v_lshl_add_u32 v{VF}, v17, 4, v{VF}")
    A("v_bfe_u32 v18, v1, 1, 1")
    A(f"v_lshl_add_u32 v{VF}, v18, 3, v{VF}")
    A("v_bfe_u32 v18, v1, 2, 2")
    A("v_lshlrev_b32 v19, 3, v18")
    A(f"v_sub_u32 v{VF}, v{VF}, v19")
    A("s_add_u32 s15, s13, 32")
    A(f"v_add_u32 v{VF}, s15, v{VF}")
    A("v_and_b32 v19, 3, v1")
    A("v_lshl_add_u32 v19, v17, 2, v19")
    A("v_sub_u32 v20, v19, v16")
    A("v_add_u32 v20, 2, v20")
    A("v_lshrrev_b32 v21, 1, v20")
    A(f"v_lshlrev_b32 v{VG}, 7, v21")
    A("v_and_b32 v20, 1, v20")
    A(f"v_lshl_add_u32 v{VG}, v20, 4, v{VG}")
    A(f"v_lshl_add_u32 v{VG}, v18, 5, v{VG}")
    A(f"s_add_u32 s15, s13, {KSZ}")
    A(f"v_add_u32 v{VG}, s15, v{VG}")
    A(f"v_mul_u32_u24 v{VH}, 129, v18")
    A(f"v_lshl_add_u32 v{VH}, v19, 1, v{VH}")
    A(f"v_add_u32 v{VH}, v{VH}, v16")
    A(f"s_add_u32 s15, s13, {KSZ+USZ-129*16}")
    A(f"v_lshl_add_u32 v{VH}, v{VH}, 4, s15")
    A("v_and_b32 v20, 1, v18")
    A("v_mul_u32_u24 v20, 3, v20")
    A("v_xor_b32 v20, s11, v20")
    A("v_lshrrev_b32 v21, 1, v18")
    A(f"v_lshlrev_b32 v{VX}, 9, v20")
    A("v_lshrrev_b32 v22, 1, v19")
    A(f"v_lshl_add_u32 v{VX}, v22, 7, v{VX}")
    A("v_and_b32 v22, 1, v19")
    A(f"v_lshl_add_u32 v{VX}, v22, 4, v{VX}")
    A(f"v_lshl_add_u32 v{VX}, v16, 3, v{VX}")
    A(f"v_lshl_add_u32 v{VX}, v21, 2, v{VX}")
    A(f"s_add_u32 s15, s13, {KSZ+512}")
    A(f"v_add_u32 v{VX}, s15, v{VX}")
    A(f"v_lshlrev_b32 v{VY}, 9, v20")
    A(f"v_lshl_add_u32 v{VY}, v19, 6, v{VY}")
    A(f"v_lshl_add_u32 v{VY}, v16, 5, v{VY}")
    A(f"v_lshl_add_u32 v{VY}, v21, 4, v{VY}")
    A("v_and_b32 v16, 15, v1")
    A("v_lshrrev_b32 v17, 4, v1")
    A(f"v_lshlrev_b32 v{VO}, 10, v16")
    A(f"v_lshl_add_u32 v{VO}, v17, 4, v{VO}")
    A("s_lshl_b32 s24, s8, 2")
    A("s_add_u32 s24, s24, s10")
    A("s_lshl_b32 s24, s24, 14")
    A("s_lshl_b32 s25, s9, 7")
    A("s_add_u32 s24, s24, s25")
    A("v_lshrrev_b32 v16, 1, v1")
    A("v_lshlrev_b32 v16, 14, v16")
    A("v_and_b32 v17, 1, v1")
    A("v_lshl_add_u32 v16, v17, 6, v16")
    A("s_lshr_b32 s26, s12, 2")
    A("s_lshl_b32 s26, s26, 7")
    A("s_and_b32 s27, s12, 3")
    A("s_lshl_b32 s27, s27, 4")
    A("s_add_u32 s26, s26, s27")
    A(f"s_add_u32 s26, s26, {XND_OFF}")
    A("v_min_u32 v18, 31, v1")
    A("v_lshlrev_b32 v18, 2, v18")
    return L

WW = [5]
def weight(it):
    if isinstance(it, tuple): return 4 if it[0] == "vm" else 0
    if it.startswith("v_mfma"): return 8
    if it.startswith(TRANS): return 2
    if it.startswith("s_waitcnt lgkm"): return 6
    if it.startswith("ds_write_b128"): return WW[0]
    if it.startswith("s_"): return 0.5
    return 1

def ln_code(A, opt, srds):
    A("v_lshrrev_b32 v8, 3, v1")
    A("v_and_b32 v9, 7, v1")
    A("v_lshlrev_b32 v10, 12, v8")
    A("v_lshl_add_u32 v10, v9, 4, v10")
    A("s_and_b32 s12, s3, 3")
    A("s_lshr_b32 s13, s3, 2")
    A("s_lshl_b32 s10, s8, 16")
    A("s_lshl_b32 s11, s12, 10")
    A("s_add_u32 s10, s10, s11")
    A("s_lshl_b32 s11, s13, 15")
    A("s_add_u32 s10, s10, s11")
    A("s_mov_b32 s50, 0x200000"); A("s_mov_b32 s51, 0x20000")
    A(f"s_mov_b32 s15, {EP_OFF}")
    A("s_waitcnt lgkmcnt(0)")
    A("s_mov_b64 s[48:49], s[16:17]")
    X = 128; F = 64
    for q in range(8): A(f"buffer_load_dwordx4 v[{X+4*q}:{X+4*q+3}], v10, {SX}, s10 offen offset:{q*128}")
    A("s_load_dword s34, s[46:47], s15")
    for x in srds(): A(x)
    RS = 1056
    A(f"s_mul_i32 s10, s12, {16*RS}")
    A(f"s_mul_i32 s11, s13, {RS}")
    A("s_add_u32 s11, s11, s10")
    A(f"v_mul_u32_u24 v11, {2*RS}, v8")
    A("v_lshl_add_u32 v11, v9, 4, v11")
    A("v_add_u32 v11, s11, v11")
    A("v_bfe_u32 v12, v1, 2, 2")
    A("v_and_b32 v13, 1, v1")
    A("v_lshl_add_u32 v12, v12, 1, v13")
    A(f"v_mul_u32_u24 v12, {RS}, v12")
    A("v_lshrrev_b32 v13, 4, v1")
    A("v_lshl_add_u32 v12, v13, 4, v12")
    A("v_bfe_u32 v13, v1, 1, 1")
    A("v_lshl_add_u32 v12, v13, 3, v12")
    A("s_lshl_b32 s11, s13, 9")
    A("s_add_u32 s10, s10, s11")
    A("v_add_u32 v12, s10, v12")
    A("v_lshlrev_b32 v13, 5, v8")
    A("s_lshl_b32 s10, s8, 9")
    A("s_lshl_b32 s11, s13, 8")
    A("s_add_u32 s10, s10, s11")
    A("s_lshl_b32 s11, s12, 3")
    A("s_add_u32 s10, s10, s11")
    A(f"s_add_u32 s10, s10, {ST_OFF}")
    A("s_lshl_b32 s11, s8, 16")
    A("s_lshl_b32 s12, s12, 14")
    A("s_add_u32 s11, s11, s12")
    A("s_lshl_b32 s13, s13, 13")
    A("s_add_u32 s11, s11, s13")
    A(f"s_add_u32 s11, s11, {XND_OFF}")
    A("s_mov_b32 s14, 0x3f803f80")
    def red8(r):
        A(f"v_add_f32_dpp v{r}, v{r}, v{r} quad_perm:[1,0,3,2] row_mask:0xf bank_mask:0xf")
        A(f"v_add_f32_dpp v{r}, v{r}, v{r} quad_perm:[2,3,0,1] row_mask:0xf bank_mask:0xf")
        A(f"v_add_f32_dpp v{r}, v{r}, v{r} row_half_mirror row_mask:0xf bank_mask:0xf")
    for r in range(16, 22): A(f"v_mov_b32 v{r}, 0")
    stamp(A, opt, 1)
    for q in range(32):
        if q % 4 == 0: A(f"s_waitcnt vmcnt({7 - q // 4})")
        A(f"v_dot2c_f32_bf16 v{16+(q&1)}, s14, v{X+q}")
        A(f"v_lshlrev_b32 v{F+2*q}, 16, v{X+q}")
        A(f"v_and_b32 v{F+2*q+1}, 0xffff0000, v{X+q}")
    stamp(A, opt, 2)
    A("v_add_f32 v16, v16, v17")
    red8(16)
    A(f"v_mul_f32 v16, {fhex(-1/512)}, v16")
    for q in range(32):
        A(f"v_pk_add_f32 v[{F+2*q}:{F+2*q+1}], v[{F+2*q}:{F+2*q+1}], v[16:17] op_sel_hi:[1,0]")
    for q in range(32):
        a = 18 + 2 * (q & 1)
        A(f"v_pk_fma_f32 v[{a}:{a+1}], v[{F+2*q}:{F+2*q+1}], v[{F+2*q}:{F+2*q+1}], v[{a}:{a+1}]")
    A("v_pk_add_f32 v[18:19], v[18:19], v[20:21]")
    A("v_cvt_pk_bf16_f32 v17, v16, v16")
    A("v_add_f32 v18, v18, v19")
    red8(18)
    A("s_waitcnt lgkmcnt(0)")
    A("s_add_u32 s34, s34, 2")
    A("s_or_b32 s34, s34, 1")
    A(f"v_mul_f32 v18, {fhex(1/512)}, v18")
    A("v_cvt_pk_bf16_f32 v18, v18, v18")
    A("v_and_b32 v18, 0xffff0000, v18")
    A(f"v_add_f32 v18, {fhex(1e-5)}, v18")
    A("v_cvt_pk_bf16_f32 v18, v18, v18")
    A("v_and_b32 v18, 0xffff0000, v18")
    A("v_sqrt_f32 v18, v18")
    A("v_and_b32 v19, 0xffff0000, v17")
    A("v_mov_b32 v23, s34")
    A("v_cvt_pk_bf16_f32 v22, v19, v18")
    A("v_sub_f32 v19, v19, v16")
    A("v_and_b32 v20, 0xffff0000, v22")
    A("v_rcp_f32 v20, v20")
    A("s_mov_b32 exec_lo, 0x01010101"); A("s_mov_b32 exec_hi, 0x01010101")
    A(f"buffer_store_dwordx2 v[22:23], v13, {SW}, s10 offen sc1")
    A("s_mov_b64 exec, -1")
    A("v_mul_f32 v21, v19, v20")
    for q in range(32):
        A(f"v_pk_fma_f32 v[{F+2*q}:{F+2*q+1}], v[{F+2*q}:{F+2*q+1}], v[20:21], v[20:21] op_sel:[0,0,1] op_sel_hi:[1,0,1]")
    for q in range(32):
        A(f"v_cvt_pk_bf16_f32 v{X+q}, v{F+2*q}, v{F+2*q+1}")
        if q & 3 == 3: A(f"ds_write_b128 v11, v[{X+q-3}:{X+q}] offset:{(q>>2)*128}")
    A("v_lshlrev_b32 v13, 4, v1")
    A("s_waitcnt lgkmcnt(0)")
    A("s_barrier")
    stamp(A, opt, 3)
    for blk in range(8):
        b = 64 + 4 * blk
        A(f"ds_read_b64_tr_b16 v[{b}:{b+1}], v12 offset:{blk*64}")
        A(f"ds_read_b64_tr_b16 v[{b+2}:{b+3}], v12 offset:{blk*64+8*RS}")
        if blk == 6: A("s_waitcnt lgkmcnt(12)")
    for blk in range(8):
        A(f"s_waitcnt lgkmcnt({14-2*blk})")
        A(f"buffer_store_dwordx4 v[{64+4*blk}:{67+4*blk}], v13, {SW}, s11 offen offset:{(blk&3)*1024} sc1")
        if blk == 3: A("s_add_u32 s11, s11, 4096")

def gen_kf(opt):
    A = Asm()
    ld = opt.get("ldflag", "")
    tmo = opt.get("tmo", 0x40000)
    def srds():
        return ["s_mov_b64 s[60:61], s[40:41]", f"s_mov_b32 s62, {1792*1024}", "s_mov_b32 s63, 0x20000",
                "s_mov_b64 s[64:65], s[42:43]", "s_mov_b32 s66, 0x200000", "s_mov_b32 s67, 0x20000",
                "s_mov_b64 s[68:69], s[46:47]", f"s_mov_b32 s70, {WS_SIZE}", "s_mov_b32 s71, 0x20000",
                "s_mov_b64 s[72:73], s[44:45]", "s_mov_b32 s74, 256", "s_mov_b32 s75, 0x20000"]
    A("s_cmp_ge_u32 s2, 256")
    A("s_cbranch_scc1 .L_end")
    A("s_load_dwordx16 s[16:31], s[0:1], 0")
    A("s_load_dwordx16 s[32:47], s[0:1], 64")
    stamp(A, opt, 0)
    if opt.get("stamps"): A("s_memrealtime s[76:77]")
    A("v_lshrrev_b32 v2, 6, v0")
    A("v_and_b32 v1, 63, v0")
    A("v_readfirstlane_b32 s3, v2")
    A("s_and_b32 s6, s2, 7")
    A("s_lshr_b32 s7, s2, 3")
    A("s_lshr_b32 s4, s6, 2")
    A("s_lshl_b32 s4, s4, 2")
    A("s_and_b32 s5, s7, 3")
    A("s_add_u32 s4, s4, s5")
    A("s_lshl_b32 s8, s6, 2")
    A("s_add_u32 s8, s8, s5")
    A("s_lshr_b32 s9, s7, 2")
    A("s_and_b32 s5, s6, 3")
    A("s_cmp_ge_u32 s7, 28")
    A("s_cbranch_scc1 .L_ln")
    A("s_cmp_lt_u32 s3, 4")
    A("s_cbranch_scc0 .L_help")
    if opt.get("codepf", 1):
        A("s_getpc_b64 s[78:79]")
        A(".L_pc:")
        A("s_sub_u32 s78, s78, .L_pc-KSTART")
        A("s_subb_u32 s79, s79, 0")
        A("s_lshl_b32 s10, s9, 2")
        A("s_add_u32 s10, s10, s3")
        A("s_lshl_b32 s10, s10, 11")
        A("v_lshl_add_u32 v2, v1, 5, s10")
        A("v_min_u32 v2, CODE_END-KSTART, v2")
        A("global_load_dword v14, v2, s[78:79]")
    A("s_branch .L_w03")
    A(".L_help:")
    A("s_sub_u32 s10, s3, 4")
    A("s_and_b32 s11, s10, 1")
    A("s_lshr_b32 s12, s10, 1")
    A("v_lshrrev_b32 v8, 3, v1")
    A("v_and_b32 v9, 7, v1")
    A("v_lshrrev_b32 v10, 4, v1")
    g = opt.get("rot", "s9")
    if g == "s9": A("s_add_u32 s79, s4, s9")
    elif g == 0: A("s_mov_b32 s79, s4")
    else:
        A(f"s_and_b32 s79, s9, {g[0]}"); A(f"s_mul_i32 s79, s79, {g[1]}"); A("s_add_u32 s79, s79, s4")
    A("s_mul_i32 s101, s5, 7")
    A("s_add_u32 s101, s101, s9")
    A(f"s_lshl_b32 s13, s12, 14")
    A(f"s_add_u32 s13, s13, {CB}")
    A("s_lshl_b32 s100, s10, 13")
    A("s_mov_b32 s50, 0x200000"); A("s_mov_b32 s51, 0x20000")
    A("s_cmp_eq_u32 s11, 0")
    A("s_cbranch_scc0 .L_kw")
    if opt.get("dprio", 0): A(f"s_setprio {opt['dprio']}")
    vm = Cnt(A, "vmcnt", 63)
    A("v_xor_b32 v11, v9, v10")
    A("v_lshlrev_b32 v11, 4, v11")
    A("v_lshl_add_u32 v2, v8, 10, v11")
    A("v_xor_b32 v3, 64, v2")
    A("v_add_u32 v3, 7168, v3")
    A("v_add_u32 v4, 14336, v2")
    A("v_add_u32 v5, 14336, v3")
    A("s_lshl_b32 s78, s4, 2")
    A("s_add_u32 s78, s78, s10")
    A("s_lshl_b32 s78, s78, 16")
    A("v_and_b32 v10, 1, v10")
    A("v_lshlrev_b32 v11, 1, v10")
    A("v_xor_b32 v11, v9, v11")
    A("v_lshlrev_b32 v11, 4, v11")
    A("v_lshl_add_u32 v12, s10, 3, v8")
    A("v_mul_u32_u24 v12, 3584, v12")
    A("v_add_u32 v6, v12, v11")
    A("v_xor_b32 v7, 64, v6")
    A(f"v_add_u32 v32, {8*3584-1024}, v6")
    A(f"v_add_u32 v33, {8*3584-1024}, v7")
    A(f"s_mov_b32 s54, {512*3584}"); A("s_mov_b32 s55, 0x20000")
    A(f"s_mov_b32 s58, {512*3584}"); A("s_mov_b32 s59, 0x20000")
    A("s_lshl_b32 s101, s101, 7")
    A(f"s_mov_b32 s15, {EP_OFF}")
    def wdv():
        return ["v_lshlrev_b32 v10, 2, v10", "v_xor_b32 v9, v9, v10", "v_lshlrev_b32 v9, 4, v9", "v_lshl_add_u32 v8, v8, 10, v9", "v_add_u32 v9, 7168, v8"]
    for x in wdv(): A(x)
    A("s_lshr_b32 s14, s100, 2")
    A(f"s_add_u32 s14, s14, {WR}")
    A("s_cmp_ge_u32 s7, 28")
    A("s_waitcnt lgkmcnt(0)")
    A("s_mov_b64 s[52:53], s[36:37]")
    A("s_mov_b64 s[56:57], s[38:39]")
    A("s_mov_b64 s[48:49], s[16:17]")
    A("s_cbranch_scc1 .L_daux")
    stamp(A, opt, 1, 2)
    def dx(i, e, tb):
        L = []
        if e == 0 and tb == 0:
            L += [f"s_add_u32 s18, s79, {i}", "s_and_b32 s18, s18, 7", "s_lshl_b32 s18, s18, 7", "s_add_u32 s18, s18, s78"]
        else: L.append("s_add_u32 s18, s18, 32768")
        L.append(f"s_add_u32 m0, s100, {(i % 3) * 32768 + e * 8192 + tb * 4096}")
        for q in range(4): L.append(("vm", f"buffer_load_dwordx4 v{2+q}, {SX}, s18 offen" + (f" offset:{q*1024}" if q else "") + f" lds{ld}", ("x", i)))
        return L
    def dw(h):
        if h & 1: L = [f"s_add_u32 s19, s19, {32*3584}"]
        else: L = [f"s_add_u32 s19, s79, {h >> 1}", "s_and_b32 s19, s19, 7", f"s_mul_i32 s19, s19, {64*3584}", "s_add_u32 s19, s19, s101"]
        L += [f"s_add_u32 m0, s14, {(h & 3) * 8192}",
              ("vm", f"buffer_load_dwordx4 v6, {SG}, s19 offen lds{ld}", ("w", h)), ("vm", f"buffer_load_dwordx4 v32, {SG}, s19 offen offset:1024 lds{ld}", ("w", h)),
              f"s_add_u32 m0, s14, {(h & 3) * 8192 + 2048}",
              ("vm", f"buffer_load_dwordx4 v7, {SU}, s19 offen lds{ld}", ("w", h)), ("vm", f"buffer_load_dwordx4 v33, {SU}, s19 offen offset:1024 lds{ld}", ("w", h))]
        return L
    wld = opt.get("wld", "")
    wrot = opt.get("wrot", 1)
    def dd2(s):
        o = RREG[s >> 2] + (s & 3) * 2048
        L = rot_off("s47", "s20", "s46", s, 14, wrot)
        for e in range(2):
            if e: L.append(f"s_add_u32 s47, s47, {28 * 16384}")
            L += [f"s_add_u32 m0, s100, {o + e * 8192}", ("vm", f"buffer_load_dwordx4 v8, {SD}, s47 offen lds{wld}", ("d", s)),
                  ("vm", f"buffer_load_dwordx4 v9, {SD}, s47 offen offset:1024 lds{wld}", ("d", s))]
        return L
    def emit(c, it):
        if isinstance(it, tuple):
            if it[0] == "vm": c.op(it[1], it[2])
            elif it[0] == "vmwait": c.wait(*it[1:])
            elif it[0] == "call": it[1]()
            else: raise Exception(it)
        else: A(it)
    def late_setup(tagload=True, wd=True):
        return (["s_load_dword s34, s[46:47], s15"] if tagload else []) + srds() + \
               (["s_mul_i32 s46, s10, 28", "s_lshl_b32 s46, s46, 14", "s_lshl_b32 s47, s9, 7", "s_add_u32 s46, s46, s47", "v_add_u32 v8, s46, v8", "v_add_u32 v9, s46, v9"] + rot_phase("s46", 14) if wd else []) + \
               ["s_lshl_b32 s15, s2, 2", "s_load_dword s17, s[32:33], s15", "s_lshl_b32 s15, s2, 1", "s_add_u32 s12, s12, s15"]
    tagfix = ["s_add_u32 s34, s34, 2", "s_or_b32 s34, s34, 1"]
    S = []
    for h in range(16):
        if h & 1 == 0:
            xs = [(h - 4 if h >= 6 else 1 if h == 4 else -1, h, dx(h >> 1, e, tb)) for e in range(2) for tb in range(2)]
            w = [(h - 3 if h >= 4 else -1, h, dw(h))]
            S += (w + xs) if h == 0 or opt.get("wfirst") else (xs + w)
        else: S.append((h - 3 if h >= 4 else -1, h, dw(h)))
    for s_ in range(8): S.append((12 if s_ < 4 else 14, 99, dd2(s_)))
    quota = opt.get("quota", [8, 4, 4, 4, 4])
    extra = late_setup() + conv_addr()
    for h in range(-1, 16):
        if h >= 0:
            if h == 0: stamp(A, opt, 8, 2)
            if opt.get("stamps") == 3 and h in (2, 4, 6, 8): stamp(A, opt, h - 1, 3)
            if opt.get("stamps") == 4 and h in (9, 11, 13, 15): stamp(A, opt, h - 8, 4)
            vm.wait(("w", h), ("x", h >> 1))
            if h == 0: stamp(A, opt, 9, 2); stamp(A, opt, 1)
            if opt.get("stamps") == 3 and h in (2, 4, 6, 8): stamp(A, opt, h, 3)
            if opt.get("stamps") == 4 and h in (9, 11, 13, 15): stamp(A, opt, h - 7, 4)
            bstamp(A, opt, h, 0)
            A("s_barrier")
            bstamp(A, opt, h, 1)
            if h == 0: stamp(A, opt, 2)
        q = quota[h + 1] if h + 1 < len(quota) else quota[-1]
        n = 0
        while True:
            c = [k for k, t in enumerate(S) if t[0] <= h]
            if not c: break
            k = c[0]
            if n >= q and S[k][1] > h + 1 and h < 15: break
            for it in S.pop(k)[2]: emit(vm, it)
            n += 1
            if h == -1 and n in (1, 3, 5, 6, 7, 8): stamp(A, opt, {1: 2, 3: 3, 5: 4, 6: 5, 7: 6, 8: 7}[n], 2)
        if h == -1 or h >= opt.get("xslice", 0):
            for _ in range(len(late_setup()) if h == -1 else opt.get("xper", 12)):
                if extra: A(extra.pop(0))
        if h == 1:
            A("s_waitcnt lgkmcnt(0)")
            for x in tagfix: A(x)
    assert not S and not extra
    A("s_barrier")
    stamp(A, opt, 3)
    A(".L_dpost:")
    for s_ in range(8, 16):
        for it in dd2(s_): A(it if isinstance(it, str) else it[1])
    A("s_lshl_b32 s15, s10, 1")
    A(f"s_add_u32 s15, s15, {FL+40}")
    A("v_mov_b32 v16, s15")
    A(f"s_mov_b32 s28, {tmo * 8}")
    A(".L_kf:")
    A("ds_read_b32 v17, v16")
    A("s_sub_u32 s28, s28, 1")
    A("s_cbranch_scc1 .L_conv")
    A("s_waitcnt lgkmcnt(0)")
    A("v_readfirstlane_b32 s15, v17")
    A("s_cmp_eq_u32 s15, 0")
    A("s_cbranch_scc0 .L_conv")
    A("s_sleep 1")
    A("s_branch .L_kf")
    A(".L_daux:")
    for x in late_setup(False) + conv_addr(): A(x)
    for h in range(16):
        A("s_barrier")
        if h & 1:
            for it in dd2(h >> 1): A(it if isinstance(it, str) else it[1])
    A("s_barrier")
    stamp(A, opt, 5)
    A("s_branch .L_dpost")
    A(".L_ln:")
    ln_code(A, opt, srds)
    A("s_waitcnt vmcnt(0)")
    stamp(A, opt, 4)
    A("s_barrier")
    A("s_cmp_lt_u32 s3, 4")
    A("s_cbranch_scc0 .L_help")
    A("s_cmp_lg_u32 s3, 0")
    A("s_cbranch_scc1 .L_w03")
    A("s_lshl_b32 s13, s8, 2")
    A("v_mov_b32 v13, 0")
    A("v_mov_b32 v16, 1")
    A("s_mov_b64 exec, 1")
    A(f"buffer_store_dword v16, v13, {SB}, s13 offen sc1")
    A("s_mov_b64 exec, -1")
    A("s_branch .L_w03")
    A(".L_auxbar:")
    for _ in range(17): A("s_barrier")
    stamp(A, opt, 5)
    A("s_branch .L_g2")
    A(".L_kw:")
    if opt.get("kprio", 0): A(f"s_setprio {opt['kprio']}")
    vk = Cnt(A, "vmcnt", 63)
    A("s_lshl_b32 s14, s2, 1")
    A("s_add_u32 s14, s14, s12")
    A("s_lshl_b32 s15, s14, 1")
    A("v_mov_b32 v35, s15")
    A("s_lshl_b32 s14, s14, 8")
    A("v_lshl_add_u32 v34, v1, 1, s14")
    for r in range(36, 41): A(f"v_mov_b32 v{r}, 0")
    A(f"s_add_u32 s14, s13, {TB}")
    A(f"s_mov_b32 s15, {EP_OFF}")
    A("s_waitcnt lgkmcnt(0)")
    vk.op("global_load_short_d16_hi v36, v35, s[30:31]", "par")
    for hf in range(2):
        for k in range(2): vk.op(f"global_load_short_d16_hi v{37+2*hf+k}, v34, s[{18+2*k}:{19+2*k}]" + (" offset:128" if hf else ""), ("par", hf))
    A("s_mov_b64 s[48:49], s[16:17]")
    A("s_cmp_ge_u32 s7, 28")
    A("s_cbranch_scc1 .L_ktag")
    A("s_load_dword s34, s[46:47], s15")
    A(".L_ktag:")
    A("v_bfe_u32 v4, v1, 4, 1")
    A("v_lshlrev_b32 v2, 11, v4")
    A("v_lshrrev_b32 v4, 5, v1")
    A("v_lshl_add_u32 v2, v4, 10, v2")
    A("v_bfe_u32 v4, v1, 2, 2")
    A("v_lshl_add_u32 v2, v4, 7, v2")
    A("v_and_b32 v4, 3, v1")
    A("v_lshl_add_u32 v2, v4, 3, v2")
    A("v_bfe_u32 v4, v1, 3, 2")
    A("v_lshl_add_u32 v2, v4, 5, v2")
    A(f"v_add_u32 v2, {WR}, v2")
    A("s_lshl_b32 s15, s12, 6")
    A("v_xor_b32 v2, s15, v2")
    A("v_xor_b32 v3, 32, v2")
    for r in range(56, 60): A(f"v_mov_b32 v{r}, 0x3f803f80")
    A("s_lshl_b32 s35, s101, 13")
    A("s_lshl_b32 s15, s12, 9")
    A("s_add_u32 s35, s35, s15")
    A(f"s_add_u32 s35, s35, {CS_OFF}")
    A("s_lshl_b32 s78, s4, 11")
    A("s_lshl_b32 s15, s12, 10")
    A("s_add_u32 s78, s78, s15")
    A(f"s_add_u32 s78, s78, {ST_OFF}")
    A("v_lshlrev_b32 v4, 3, v1")
    A("v_lshlrev_b32 v5, 4, v1")
    A("s_lshl_b32 s15, s12, 9")
    A(f"s_add_u32 s15, s15, {STL}")
    A("v_add_u32 v6, s15, v4")
    A("s_lshl_b32 s15, s12, 8")
    A(f"s_add_u32 s15, s15, {CSL}")
    A("v_lshl_add_u32 v7, v1, 2, s15")
    A("s_lshl_b32 s15, s12, 14")
    A("s_add_u32 s15, s15, 65536")
    for x in kgen_addr(): A(x)
    kx = late_setup(False, False) + conv_addr()
    for _ in range(opt.get("kearly", 99)):
        if kx: A(kx.pop(0))
    A("v_and_b32 v60, 56, v4")
    A(f"v_add_u32 v60, {FL}, v60")
    A("v_mov_b32 v62, 0"); A("v_mov_b32 v63, 0")
    A("ds_write_b64 v60, v[62:63]")
    stamp(A, opt, 1)
    nlab = [0]
    def mainonly(items):
        nlab[0] += 1
        return ["s_cmp_ge_u32 s7, 28", f"s_cbranch_scc1 .L_mo{nlab[0]}"] + items + [f".L_mo{nlab[0]}:"]
    def cspart(h):
        R = []; M = []
        for k in range(2):
            for t in range(2):
                b = 192 + 8 * k + 4 * t; o = h * 8192 + k * 4096
                R += [f"ds_read_b64_tr_b16 v[{b}:{b+1}], v{2+t} offset:{o}", f"ds_read_b64_tr_b16 v[{b+2}:{b+3}], v{2+t} offset:{o+512}"]
                c = f"v[{160+16*t}:{175+16*t}]"
                M.append(f"v_mfma_f32_32x32x16_bf16 {c}, v[56:59], v[{b}:{b+3}], {'0' if h == 0 and k == 0 else c}")
        return R, M
    GR = 20; SR = 100
    def gloads(c):
        for k in range(8):
            c(f"buffer_load_dwordx2 v[{GR+2*k}:{GR+2*k+1}], v4, {SW}, s35 offen" + (f" offset:{(k&3)*1024}" if k & 3 else "") + " sc1")
            if k == 3: A("s_add_u32 s35, s35, 4096")
        A("s_sub_u32 s35, s35, 4096")
        c(f"buffer_load_dwordx4 v[{SR}:{SR+3}], v5, {SW}, s78 offen sc1")
    def gtest():
        t = [GR + 2 * k + 1 for k in range(8)] + [SR + 1, SR + 3]
        A(f"v_xor_b32 v54, s34, v{t[0]}")
        for k in range(1, 10): A(f"v_xor_b32 v55, s34, v{t[k]}"); A("v_or_b32 v54, v54, v55")
        A("v_cmp_ne_u32 s[30:31], 0, v54")
        A("s_cmp_eq_u64 s[30:31], 0")
    def gissue():
        A("s_cmp_ge_u32 s7, 28"); A("s_cbranch_scc1 .L_gi")
        gloads(A)
        A(".L_gi:")
        vk.op(f"buffer_load_dword v19, v18, {SB}, 0 offen sc1", "poll")
    def gcheck():
        vk.wait("poll")
        A("s_cmp_ge_u32 s7, 28"); A("s_cbranch_scc1 .L_gdone")
        A(f"s_mov_b32 s28, {tmo}")
        A(".L_gt:")
        gtest()
        A("s_cbranch_scc1 .L_gok")
        A("s_sub_u32 s28, s28, 1")
        A("s_cbranch_scc1 .L_gok")
        A("s_sleep 2")
        gloads(A)
        A("s_waitcnt vmcnt(0)")
        A("s_branch .L_gt")
        A(".L_gok:")
        for st in (2, 4, 8):
            for k in range(0, 16, 2 * st): A(f"v_add_f32 v{GR+k}, v{GR+k}, v{GR+k+st}")
        A(f"v_mov_b32 v{SR+1}, v{SR+2}")
        A(f"v_cvt_pk_bf16_f32 v{GR+1}, v{GR}, v{GR}")
        A(f"v_and_b32 v{GR+1}, 0xffff0000, v{GR+1}")
        A(f"v_sub_f32 v{GR}, v{GR}, v{GR+1}")
        A(f"v_cvt_pk_bf16_f32 v{GR}, v{GR+1}, v{GR}")
        A(f"ds_write_b64 v6, v[{SR}:{SR+1}]")
        A(f"ds_write_b32 v7, v{GR}")
        A(".L_gdone:")
    def pcheck():
        A(f"s_mov_b32 s28, {tmo}")
        A(".L_pt:")
        A("v_cmp_eq_u32 s[30:31], 0, v19")
        A("s_cmp_eq_u64 s[30:31], 0")
        A("s_cbranch_scc1 .L_pok")
        A("s_sub_u32 s28, s28, 1")
        A("s_cbranch_scc1 .L_pok")
        A("s_sleep 2")
        A(f"buffer_load_dword v19, v18, {SB}, 0 offen sc1")
        A("s_waitcnt vmcnt(0)")
        A("s_branch .L_pt")
        A(".L_pok:")
        for q in range(4):
            A(f"s_add_u32 m0, s13, {KSZ+512+1024*q}")
            vk.op(f"buffer_load_dwordx4 v16, {SW}, s26 offen sc1 lds", "u")
            if q < 3: A("s_add_u32 s26, s26, 0x80000")
    WW[0] = opt.get("ww", 5)
    vk.wait(("par", 0))
    for x in k_dt(36) + kgen_y(37): A(x)
    work = kx + [("vmwait", ("par", 1))] + kgen_y(39) + k_rd(YF1, 52) + k_zero()
    budget = opt.get("budget", 50)
    PS = opt.get("pollslice", 11)
    stamp(A, opt, 8)
    for h in range(16):
        if opt.get("stamps") == 3 and h in (2, 4, 6, 8): stamp(A, opt, h - 1, 3); stamp(A, opt, h, 3)
        if opt.get("stamps") == 4 and h in (9, 11, 13, 15): stamp(A, opt, h - 8, 4); stamp(A, opt, h - 7, 4)
        bstamp(A, opt, h, 0)
        A("s_barrier")
        bstamp(A, opt, h, 1)
        if h == 0: stamp(A, opt, 2)
        b = budget; post = []
        if h < 2:
            R, M = cspart(h)
            for x in R: A(x)
            if h == 0:
                for x in k_rd(XF0, 54) + k_rd(XF1, 54, 8192): A(x)
            post = ["s_waitcnt lgkmcnt(0)"] + M
            b = 0
        if h == 2:
            post = mainonly(tagfix + ["s_and_b32 s15, s79, 7", "s_lshl_b32 s15, s15, 10", "s_add_u32 s15, s15, s35", "s_mov_b32 s30, -1", "s_mov_b32 s31, 0", "v_mov_b32 v55, s34",
                             "v_cndmask_b32 v54, v176, v160, s[30:31]", f"buffer_store_dwordx2 v[54:55], v4, {SW}, s15 offen sc1"])
            for x in post: A(x)
            post = []; b -= 10
            for x in k_rd(YF0, 52): A(x)
            b -= 16
        if h == PS: assert not work
        if h == PS: gissue(); b -= 40
        if h == PS + 2: b -= 60
        while work and b > 0:
            it = work.pop(0); b -= weight(it)
            kx = opt.get("kx")
            if kx == "nowrite" and isinstance(it, str) and it.startswith("ds_write_b32"): continue
            if kx == "novalu" and isinstance(it, str) and it.startswith("v_") and not it.startswith("v_mfma"): continue
            if kx == "nocvt" and isinstance(it, str) and it.startswith("v_cvt_pk"): continue
            if kx == "nop" and isinstance(it, str) and it.startswith("v_") and not it.startswith("v_mfma"): it = "s_nop 0"
            emit(vk, it)
        for x in post: A(x)
        if h == PS + 2: gcheck(); pcheck()
        if h == 14: A("s_waitcnt lgkmcnt(0)")
    assert not work, f"kgen not finished {len(work)}"
    A("s_barrier")
    stamp(A, opt, 3)
    for x in k_mf(0) + k_mf(1): A(x)
    A("s_lshl_b32 s15, s10, 1")
    A(f"s_add_u32 s15, s15, {FL+38}")
    A("v_mov_b32 v16, s15")
    for x in k_tail(opt): A(x)
    A("s_waitcnt vmcnt(0) lgkmcnt(0)")
    A("ds_write_b32 v16, v16")
    A(".L_conv:")
    A(f"s_setprio {opt.get('prio', 0)}")
    ZA = 64; FR = 128; U = 32
    def Freg(st, q): return FR + st * 64 + q * 4
    def Greg(st, d): return FR + st * 64 + 32 + d * 4
    def ldF(w, q):
        b = Freg(w & 1, q); pp = 4 * q + w
        return [f"ds_read_b64_tr_b16 v[{b}:{b+1}], v{VF} offset:{128*pp+32}", f"ds_read_b64_tr_b16 v[{b+2}:{b+3}], v{VF} offset:{128*pp}"]
    def ldG(w, d):
        b = Greg(w & 1, d)
        return [f"ds_read_b128 v[{b}:{b+3}], v{VG} offset:{512*d+128*(3-w)}"]
    A("s_waitcnt lgkmcnt(0)")
    A("s_cmp_eq_u32 s11, 0")
    A("s_cbranch_scc0 .L_t1")
    for ty in range(2):
        if ty: A(".L_t1:")
        tiles = [0, 3, 4, 7] if ty == 0 else [1, 2, 5, 6]
        nf = tiles[-1] + 1
        prs = [(q, at - q, ti) for ti, at in enumerate(tiles) for q in range(at + 1)]
        prs.sort(key=lambda x: (max(x[0], x[1]), x[2]))
        seq = []; rem = prs[:]
        while rem:
            k = 0
            if seq and rem[0][2] == seq[-1][2]:
                for kk in range(1, min(4, len(rem))):
                    if rem[kk][2] != seq[-1][2]: k = kk; break
            seq.append(rem.pop(k))
        def loads(w):
            L = []
            for i in range(nf): L.append((("F", i), ldF(w, i))); L.append((("G", i), ldG(w, i)))
            return L
        first = {}
        for w in range(4):
            if w == 0:
                L = loads(0); flat = []; pos = {}
                for key, ins in L:
                    flat += ins; pos[key] = len(flat)
                issued = 0
                def pump(upto):
                    nonlocal issued
                    while issued < min(upto, len(flat)): A(flat[issued]); issued += 1
                flat = flat + sum((ins for _, ins in loads(1)), [])
                pump(12)
            else:
                A("s_waitcnt lgkmcnt(0)")
                flat = sum((ins for _, ins in loads(w + 1)), []) if w < 3 else \
                    [f"ds_read_b32 v{U+4*p+b}, v{VX} offset:{2048*p+32*b}" for p in range(2) for b in range(4)]
                issued = 0
                if w == 3:
                    A("s_lshl_b32 s15, s10, 2")
                    A(f"s_add_u32 s15, s15, {FL}")
                    A("v_mov_b32 v16, s15")
                    A("v_mov_b32 v17, s34")
                if w == opt.get("wflagw", 2) and ty == 0:
                    A(f"v_mov_b32 v18, {FL}")
                    A("v_mov_b32 v19, 1")
                    A("s_waitcnt vmcnt(0)")
                    A("s_mov_b64 exec, 1")
                    A("ds_add_u32 v18, v19")
                    A("s_mov_b64 exec, -1")
            waited = 0
            for n, (q, d, ti) in enumerate(seq):
                if w == 0:
                    need_ = max(pos[("F", q)], pos[("G", d)])
                    if need_ > waited:
                        pump(need_)
                        A(f"s_waitcnt lgkmcnt({min(15, issued - need_)})"); waited = need_
                c = f"v[{ZA+16*ti}:{ZA+16*ti+15}]"
                a = Freg(w & 1, q); b = Greg(w & 1, d)
                A(f"v_mfma_f32_32x32x16_bf16 {c}, v[{a}:{a+3}], v[{b}:{b+3}], {c if ti in first else '0'}")
                first[ti] = 1
                pump(issued + (3 if w == 0 else 2))
            pump(len(flat))
        A("s_mov_b32 exec_lo, 0xfff0fff0")
        A("s_mov_b32 exec_hi, 0xfff0fff0")
        for ti in range(4):
            A(f"ds_write_b128 v{VH}, v[{ZA+16*ti+12}:{ZA+16*ti+15}] offset:{256*tiles[ti]+16}")
        A("s_mov_b64 exec, -1")
        A("v_add_u32 v16, 16, v16")
        A("v_xor_b32 v18, 4, v16")
        A("s_waitcnt lgkmcnt(0)")
        A("ds_write_b32 v16, v17")
        A(f"s_mov_b32 s28, {opt.get('tmo', 0x40000) * 8}")
        A(f".L_hw{ty}:")
        A("ds_read_b32 v19, v18")
        A("s_sub_u32 s28, s28, 1")
        A(f"s_cbranch_scc1 .L_hx{ty}")
        A("s_waitcnt lgkmcnt(0)")
        A("v_readfirstlane_b32 s15, v19")
        A("s_cmp_eq_u32 s15, 0")
        A(f"s_cbranch_scc1 .L_hw{ty}")
        A(f".L_hx{ty}:")
        HR = 128
        for ti in range(4):
            A(f"ds_read_b128 v[{HR+4*ti}:{HR+4*ti+3}], v{VH} offset:{256*tiles[ti]}")
        if ty == 0: A("s_branch .L_tdone")
    A(".L_tdone:")
    stamp(A, opt, 4)
    HR = 128; S = 144; O = 192
    def z(ti, i): return HR + 4 * ti + 4 + i if i < 0 else ZA + 16 * ti + i
    for ti in range(4):
        for i in range(9):
            A(f"v_add_f32_dpp v{S+12*ti+i}, v{z(ti,i+7)}, v{z(ti,i+5)} row_ror:8 row_mask:0xf bank_mask:0xc")
    for ti in range(4):
        for i in range(3, 9):
            A(f"v_add_f32_dpp v{S+12*ti+i}, v{z(ti,i-3)}, v{z(ti,i-1)} row_ror:8 row_mask:0xf bank_mask:0x3")
    A("s_waitcnt lgkmcnt(0)")
    for ti in range(4):
        for i in range(3):
            A(f"v_add_f32_dpp v{S+12*ti+i}, v{z(ti,i-3)}, v{z(ti,i-1)} row_ror:8 row_mask:0xf bank_mask:0x3")
    A("s_lshl_b32 s14, s17, 16")
    A("s_and_b32 s15, s17, 0xffff0000")
    A("s_bitcmp0_b32 s12, 0")
    A("s_cselect_b32 s14, s14, s15")
    A("s_lshl_b32 s12, s12, 12")
    A(f"s_add_u32 s12, s12, {YT_OFF}")
    for p in range(2):
        a_, b_ = S + 12 * (2 * p), S + 12 * (2 * p + 1)
        for k in range(8):
            A(f"v_add_f32_dpp v{O+8*p+k}, v{a_+k}, v{a_+k+1} row_shl:4 row_mask:0xf bank_mask:0x5")
        for k in range(8):
            A(f"v_add_f32_dpp v{O+8*p+k}, v{b_+k+1}, v{b_+k} row_shr:4 row_mask:0xf bank_mask:0xa")
    T = 64
    for p in range(2):
        for b in range(4):
            A(f"v_lshlrev_b32 v{T+8*p+b}, 16, v{U+4*p+b}")
            A(f"v_and_b32 v{T+8*p+b+4}, 0xffff0000, v{U+4*p+b}")
        for k in range(8): A(f"v_fmac_f32 v{O+8*p+k}, s14, v{T+8*p+k}")
        for k in range(4): A(f"v_cvt_pk_bf16_f32 v{80+4*p+k}, v{O+8*p+2*k}, v{O+8*p+2*k+1}")
        A(f"buffer_store_dwordx4 v[{80+4*p}:{83+4*p}], v{VY}, {SW}, s12 offen offset:{2048*p} sc1")
    A("v_and_b32 v8, 31, v1")
    A("v_lshlrev_b32 v8, 2, v8")
    A("s_lshl_b32 s14, s9, 7")
    A(f"s_add_u32 s14, s14, {FY_OFF}")
    A("v_lshrrev_b32 v9, 1, v1")
    A("v_lshlrev_b32 v9, 12, v9")
    A("v_and_b32 v10, 1, v1")
    A("v_lshl_add_u32 v9, v10, 4, v9")
    A(f"v_add_u32 v10, {32*4096}, v9")
    A("s_lshl_b32 s15, s9, 18")
    A("s_lshl_b32 s26, s8, 7")
    A("s_add_u32 s15, s15, s26")
    A("s_lshl_b32 s26, s10, 5")
    A("s_add_u32 s15, s15, s26")
    A(f"s_add_u32 s15, s15, {YT_OFF}")
    A(f"v_mov_b32 v11, {FL+36}")
    A("v_mov_b32 v12, 1")
    A("s_waitcnt vmcnt(0)")
    stamp(A, opt, 5)
    A("s_mov_b64 exec, 1")
    A("ds_add_rtn_u32 v13, v11, v12")
    A("s_waitcnt lgkmcnt(0)")
    A("v_readfirstlane_b32 s26, v13")
    A("s_cmp_lg_u32 s26, 3")
    A("s_cbranch_scc1 .L_nosig")
    A("s_lshl_b32 s26, s2, 2")
    A(f"s_add_u32 s26, s26, {FY_OFF}")
    A("v_mov_b32 v13, 0")
    A(f"buffer_store_dword v17, v13, {SW}, s26 offen sc1")
    A(".L_nosig:")
    A("s_mov_b64 exec, -1")
    A(f"buffer_load_dwordx4 v[{XR}:{XR+3}], v{VO}, {SX}, s24 offen")
    A(f"buffer_load_dwordx4 v[{XR+4}:{XR+7}], v{VO}, {SX}, s24 offen offset:64")
    A(f"s_mov_b32 s28, {opt.get('tmo', 0x40000)}")
    A(".L_poll:")
    A(f"buffer_load_dword v13, v8, {SW}, s14 offen sc1")
    A("s_sub_u32 s28, s28, 1")
    A("s_cbranch_scc1 .L_got")
    A("s_waitcnt vmcnt(0)")
    A("v_cmp_ne_u32 vcc, s34, v13")
    A("s_cbranch_vccz .L_got")
    A(f"s_sleep {opt.get('psleep', 4)}")
    A("s_branch .L_poll")
    A(".L_got:")
    A(f"buffer_load_dwordx4 v[64:67], v9, {SW}, s15 offen sc1")
    A(f"buffer_load_dwordx4 v[68:71], v10, {SW}, s15 offen sc1")
    stamp(A, opt, 6)
    A("s_lshl_b32 s26, s11, 11")
    A("s_add_u32 s26, s26, s13")
    A("v_lshl_add_u32 v11, v1, 4, s26")
    A("v_lshrrev_b32 v12, 4, v1")
    A("v_lshlrev_b32 v12, 8, v12")
    A("v_and_b32 v13, 15, v1")
    A("v_lshl_add_u32 v12, v13, 3, v12")
    A("v_add_u32 v12, s26, v12")
    A("v_lshrrev_b32 v14, 4, v1")
    A("v_lshlrev_b32 v14, 11, v14")
    A("v_lshl_add_u32 v14, v13, 4, v14")
    A("s_lshl_b32 s27, s10, 8")
    A("v_add_u32 v14, s27, v14")
    R = 96
    for q in range(8):
        A(f"v_lshlrev_b32 v{R+2*q}, 16, v{XR+q}")
        A(f"v_and_b32 v{R+2*q+1}, 0xffff0000, v{XR+q}")
    A("s_waitcnt vmcnt(0)")
    A("ds_write_b128 v11, v[64:67]")
    A("ds_write_b128 v11, v[68:71] offset:1024")
    A("s_waitcnt lgkmcnt(0)")
    for hf in range(2):
        for n in range(2):
            A(f"ds_read_b64_tr_b16 v[{72+4*hf+2*n}:{73+4*hf+2*n}], v12 offset:{hf*1024+n*128}")
    A("s_waitcnt lgkmcnt(0)")
    for q in range(8):
        A(f"v_lshlrev_b32 v{80+2*(q&3)}, 16, v{72+q}")
        A(f"v_and_b32 v{81+2*(q&3)}, 0xffff0000, v{72+q}")
        A(f"v_add_f32 v{R+2*q}, v{R+2*q}, v{80+2*(q&3)}")
        A(f"v_add_f32 v{R+2*q+1}, v{R+2*q+1}, v{81+2*(q&3)}")
        A(f"v_cvt_pk_bf16_f32 v{R+2*q+1}, v{R+2*q}, v{R+2*q+1}")
    for q in range(8):
        A(f"v_lshlrev_b32 v{R+2*q}, 16, v{R+2*q+1}")
        A(f"v_and_b32 v{R+2*q+1}, 0xffff0000, v{R+2*q+1}")
    stamp(A, opt, 7)
    A("s_barrier")
    A("s_lshl_b32 s15, s2, 2")
    A("s_add_u32 s15, s15, s10")
    A("s_cmp_lg_u32 s15, 0")
    A("s_cbranch_scc1 .L_noep")
    A(f"v_mov_b32 v13, {EP_OFF}")
    A("s_mov_b64 exec, 1")
    A(f"buffer_store_dword v17, v13, {SW}, 0 offen sc1")
    A("s_mov_b64 exec, -1")
    A(".L_noep:")
    P = 128
    for hf in range(2):
        for j in range(2):
            for q in range(4):
                b = P + (hf * 2 + j) * 16 + q * 4
                A(f"ds_read_b128 v[{b}:{b+3}], v14 offset:{q*8192 + hf*32768 + j*1024}")
    for hf in range(2):
        for j in range(2):
            n = hf * 2 + j; b = P + n * 16
            A(f"s_waitcnt lgkmcnt({12-4*n})")
            for e in range(0, 4, 2):
                A(f"v_pk_add_f32 v[{b+e}:{b+e+1}], v[{b+e}:{b+e+1}], v[{b+4+e}:{b+5+e}]")
                A(f"v_pk_add_f32 v[{b+8+e}:{b+9+e}], v[{b+8+e}:{b+9+e}], v[{b+12+e}:{b+13+e}]")
            for e in range(0, 4, 2):
                A(f"v_pk_add_f32 v[{b+e}:{b+e+1}], v[{b+e}:{b+e+1}], v[{b+8+e}:{b+9+e}]")
            for e in range(0, 4, 2):
                A(f"v_cvt_pk_bf16_f32 v{b+e+1}, v{b+e}, v{b+e+1}")
            for e in range(0, 4, 2):
                A(f"v_lshlrev_b32 v{b+e}, 16, v{b+e+1}")
                A(f"v_and_b32 v{b+e+1}, 0xffff0000, v{b+e+1}")
            for e in range(0, 4, 2):
                r = R + 4 * n + e
                A(f"v_pk_add_f32 v[{b+e}:{b+e+1}], v[{b+e}:{b+e+1}], v[{r}:{r+1}]")
            for e in range(0, 4, 2):
                A(f"v_cvt_pk_bf16_f32 v{64+2*n+e//2}, v{b+e}, v{b+e+1}")
        A(f"buffer_store_dwordx4 v[{64+4*hf}:{67+4*hf}], v{VO}, {SO}, s24 offen offset:{64*hf}")
    A("s_branch .L_fin")
    A(".L_w03:")
    if opt.get("gprio", 1): A(f"s_setprio {opt.get('gprio', 1)}")
    ACC = 128; WF = 64; XF = 96; CSA = 16; CSB = 32
    XP = 96
    A("s_lshl_b32 s10, s2, 2")
    A("s_add_u32 s10, s10, s3")
    A("s_and_b32 s11, s10, -2")
    A("v_mov_b32 v105, s11")
    A("s_lshl_b32 s10, s10, 7")
    A("v_lshl_add_u32 v104, v1, 1, s10")
    for r in range(XP, XP + 7): A(f"v_mov_b32 v{r}, 0")
    A(f"s_mov_b32 s15, {EP_OFF}")
    A("s_cmp_ge_u32 s7, 28")
    A("s_waitcnt lgkmcnt(0)")
    A(f"global_load_short_d16_hi v{XP+6}, v105, s[30:31]")
    for k in range(6): A(f"global_load_short_d16_hi v{XP+k}, v104, s[{18+2*k}:{19+2*k}]")
    A("s_cbranch_scc1 .L_xtag")
    A("s_load_dword s34, s[46:47], s15")
    A(".L_xtag:")
    A("s_lshl_b32 s10, s3, 13")
    A("s_add_u32 s10, s10, 65536")
    for x in tab_waddr(112, "s10"): A(x)
    A("v_and_b32 v60, 31, v1")
    A("v_lshrrev_b32 v61, 5, v1")
    A("v_bfe_u32 v62, v1, 1, 3")
    A("v_xor_b32 v62, v62, v61")
    A("v_lshlrev_b32 v62, 4, v62")
    A("v_lshl_add_u32 v62, v60, 7, v62")
    A("s_lshl_b32 s10, s3, 13")
    A("v_add_u32 v2, s10, v62")
    for kp in range(1, 4): A(f"v_xor_b32 v{2+kp}, {kp*32}, v2")
    for kp in range(4): A(f"v_add_u32 v{6+kp}, 0x10000, v{2+kp}")
    A("v_bfe_u32 v62, v1, 4, 1")
    A("v_lshlrev_b32 v10, 11, v62")
    A("v_lshl_add_u32 v10, v61, 10, v10")
    A("v_bfe_u32 v63, v1, 2, 2")
    A("v_lshl_add_u32 v10, v63, 7, v10")
    A("v_and_b32 v63, 3, v1")
    A("v_lshl_add_u32 v10, v63, 3, v10")
    A("v_bfe_u32 v63, v1, 3, 2")
    A("v_lshl_add_u32 v10, v63, 5, v10")
    A(f"v_add_u32 v10, {WR}, v10")
    for tp in range(1, 4): A(f"v_xor_b32 v{10+tp}, {tp*32}, v10")
    for r in range(CSA, CSB + 8): A(f"v_mov_b32 v{r}, 0")
    A("s_lshl_b32 s11, s3, 8")
    A(f"s_add_u32 s11, s11, {STL}")
    A("v_lshl_add_u32 v48, v60, 2, s11")
    A(f"v_lshlrev_b32 v49, 2, v60")
    A(f"v_add_u32 v49, {CSL}, v49")
    A(f"v_mov_b32 v50, {FL+32}")
    A("s_mov_b32 vcc_lo, -1"); A("s_mov_b32 vcc_hi, 0")
    A("s_lshl_b32 s12, s4, 2")
    A("s_add_u32 s12, s12, s3")
    A("s_mul_i32 s12, s12, 224")
    A("s_mul_i32 s13, s5, 7")
    A("s_add_u32 s13, s13, s9")
    A("s_lshl_b32 s13, s13, 2")
    A("s_add_u32 s12, s12, s13")
    A("s_lshl_b32 s12, s12, 10")
    A(f"s_add_u32 s13, s12, {112*1024}")
    A("v_lshlrev_b32 v51, 4, v1")
    for x in srds(): A(x)
    stamp(A, opt, 1, 2)
    A("s_waitcnt vmcnt(0)")
    stamp(A, opt, 2, 2)
    for x in kgen_x(XP, 112): A(x)
    A("s_cmp_ge_u32 s7, 28")
    A("s_waitcnt lgkmcnt(0)")
    A("s_cbranch_scc1 .L_auxbar")
    lg = Cnt(A, "lgkmcnt", 15)
    def reads(s):
        i, kp, h = s >> 2, s & 3, s >> 1
        xb = XF + 8 * (s & 1); wb = WF + 16 * (s & 1)
        xa = (6 if i % 3 == 2 else 2) + kp; xo = 32768 if i % 3 == 1 else 0
        X = lambda tb: (f"ds_read_b128 v[{xb+4*tb}:{xb+4*tb+3}], v{xa} offset:{xo+tb*4096}", ("x", s, tb))
        o = (h & 3) * 8192 + (s & 1) * 4096
        W = lambda tp: [(f"ds_read_b64_tr_b16 v[{wb+4*tp}:{wb+4*tp+1}], v{10+tp} offset:{o}", ("w", s, tp)),
                        (f"ds_read_b64_tr_b16 v[{wb+4*tp+2}:{wb+4*tp+3}], v{10+tp} offset:{o+512}", ("w", s, tp))]
        return [X(0)] + W(0) + [X(1)] + W(1) + W(2) + W(3)
    stamp(A, opt, 1)
    A("s_barrier")
    stamp(A, opt, 2)
    for t, g in reads(0): lg.op(t, g)
    c1 = -2 * 0.7978845608028654 * LOG2E
    KC = 40
    for s in range(32):
        R = reads(s + 1) if s < 31 else []
        extra = []
        if s == 29:
            R += [(f"ds_read_b32 v{52+tb}, v48 offset:{tb*128}", "st") for tb in range(2)]
        if s == 30:
            R += [(f"ds_read_b32 v{CSA+4*tp}, v49 offset:{tp*128}", "cs") for tp in range(4)]
        if s == 31:
            for tb in range(2):
                k = KC + 4 * tb; d = 52 + tb
                extra += [f"v_and_b32 v{k+2}, 0xffff0000, v{d}", f"v_and_b32 v{d}, 0xffff, v{d}", f"v_rcp_f32 v{k+1}, v{k+2}", f"v_lshl_or_b32 v{d}, v{d}, 16, v{d}",
                          f"v_mul_f32 v{k+2}, v{k+2}, v{k+2}", f"v_cndmask_b32 v{CSB+4*tb}, 0, v{d}, vcc", f"v_mul_f32 v{k}, {fhex(c1)}, v{k+1}", f"v_mul_f32 v{k+1}, v{k+1}, v{k+1}",
                          f"v_mul_f32 v{k+1}, {fhex(0.044715)}, v{k+1}", f"v_mul_f32 v{k+1}, v{k}, v{k+1}"]
        bar = s & 1
        for n in range(8):
            tp, tb = n >> 1, n & 1
            lg.wait(("x", s, tb), ("w", s, tp))
            c = f"v[{ACC+64*tb+16*tp}:{ACC+64*tb+16*tp+15}]"
            a = WF + 16 * (s & 1) + 4 * tp; b = XF + 8 * (s & 1) + 4 * tb
            A(f"v_mfma_f32_32x32x16_bf16 {c}, v[{a}:{a+3}], v[{b}:{b+3}], {'0' if s == 0 else c}")
            if bar and n == 0:
                hb = (s + 1) >> 1
                lg.all()
                if opt.get("stamps") == 3 and hb in (2, 4, 6, 8): stamp(A, opt, hb - 1, 3)
                if opt.get("stamps") == 4 and hb in (9, 11, 13, 15): stamp(A, opt, hb - 8, 4)
                bstamp(A, opt, hb, 0)
                A("s_barrier")
                bstamp(A, opt, hb, 1)
                if opt.get("stamps") == 3 and hb in (2, 4, 6, 8): stamp(A, opt, hb, 3)
                if opt.get("stamps") == 4 and hb in (9, 11, 13, 15): stamp(A, opt, hb - 7, 4)
                if s == 15: stamp(A, opt, 3)
            for _ in range(2 if len(R) <= 2 * (7 - n) else 3):
                if R: lg.op(*R.pop(0))
            for _ in range(3):
                if extra: A(extra.pop(0))
    assert not R and not extra
    for n in range(8):
        tb, tp = n >> 2, n & 3
        c = f"v[{ACC+64*tb+16*tp}:{ACC+64*tb+16*tp+15}]"
        A(f"v_mfma_f32_32x32x16_bf16 {c}, v[{CSA+4*tp}:{CSA+4*tp+3}], v[{CSB+4*tb}:{CSB+4*tb+3}], {c}")
    stamp(A, opt, 4)
    if "eprio" in opt: A(f"s_setprio {opt['eprio']}")
    for n in range(8):
        tb, tp = n >> 2, n & 3
        g = lambda e: ACC + 64 * tb + 16 * tp + e
        u = lambda e: g(e) + 8
        T = 64 + (n & 1) * 16; k = KC + 4 * tb
        if opt.get("pk"):
            pr = lambda r: f"v[{r}:{r+1}]"
            for e in range(0, 8, 2): A(f"v_pk_mul_f32 {pr(T+e)}, {pr(g(e))}, {pr(g(e))}")
            for e in range(0, 8, 2): A(f"v_pk_fma_f32 {pr(T+e)}, {pr(T+e)}, {pr(k)}, {pr(k)} op_sel:[0,1,0] op_sel_hi:[1,1,0]")
            for e in range(0, 8, 2): A(f"v_pk_mul_f32 {pr(T+e)}, {pr(T+e)}, {pr(g(e))}")
            for e in range(0, 8, 2):
                A(f"v_exp_f32 v{T+e}, v{T+e}"); A(f"v_exp_f32 v{T+e+1}, v{T+e+1}")
                A(f"v_pk_mul_f32 {pr(g(e))}, {pr(g(e))}, {pr(u(e))}")
            for e in range(0, 8, 2): A(f"v_pk_fma_f32 {pr(T+e)}, {pr(T+e)}, {pr(k+2)}, {pr(k+2)} op_sel:[0,0,0] op_sel_hi:[1,0,0]")
            for e in range(8): A(f"v_rcp_f32 v{T+e}, v{T+e}")
            for e in range(0, 8, 2): A(f"v_pk_mul_f32 {pr(g(e))}, {pr(g(e))}, {pr(T+e)}")
        else:
            for e in range(8): A(f"v_mul_f32 v{T+e}, v{g(e)}, v{g(e)}")
            for e in range(8): A(f"v_fma_f32 v{T+e}, v{T+e}, v{k+1}, v{k}")
            for e in range(8): A(f"v_mul_f32 v{T+e}, v{T+e}, v{g(e)}")
            for e in range(8):
                A(f"v_exp_f32 v{T+e}, v{T+e}")
                A(f"v_mul_f32 v{g(e)}, v{g(e)}, v{u(e)}")
            for e in range(8): A(f"v_fma_f32 v{T+e}, v{T+e}, v{k+2}, v{k+2}")
            for e in range(8): A(f"v_rcp_f32 v{T+e}, v{T+e}")
            for e in range(8): A(f"v_mul_f32 v{g(e)}, v{g(e)}, v{T+e}")
        for q in range(4): A(f"v_cvt_pk_bf16_f32 v{T+8+q}, v{g(2*q)}, v{g(2*q+1)}")
        A(f"buffer_store_dwordx4 v[{T+8}:{T+11}], v51, {SW}, s{12+tb} offen offset:{tp*1024} sc1")
    A("v_mov_b32 v52, 1")
    for x in tagfix: A(x)
    A("v_mov_b32 v54, s34")
    A("s_lshl_b32 s12, s4, 2")
    A("s_add_u32 s12, s12, s5")
    A("s_lshl_b32 s12, s12, 5")
    A("s_add_u32 s12, s12, s9")
    A("s_lshl_b32 s12, s12, 2")
    A(f"s_add_u32 s12, s12, {FH_OFF}")
    stamp(A, opt, 5)
    A("s_waitcnt vmcnt(0)")
    A("s_mov_b64 exec, 1")
    A("ds_add_rtn_u32 v53, v50, v52")
    A("s_waitcnt lgkmcnt(0)")
    A("v_readfirstlane_b32 s13, v53")
    A("s_cmp_lg_u32 s13, 3")
    A("s_cbranch_scc1 .L_nohs")
    A("v_mov_b32 v53, 0")
    A(f"buffer_store_dword v54, v53, {SW}, s12 offen sc1")
    A(".L_nohs:")
    A("s_mov_b64 exec, -1")
    A(".L_g2:")
    ACC = 64; HF = 128; WF = 32; DH = opt.get("DH", 16)
    hld = opt.get("hld", " sc1")
    A(f"v_mov_b32 v16, {FL}")
    A("v_lshlrev_b32 v2, 4, v1")
    A(f"v_add_u32 v3, {112*1024}, v2")
    A("v_lshrrev_b32 v8, 3, v1")
    A("v_and_b32 v9, 7, v1")
    A("v_bfe_u32 v10, v1, 4, 1")
    A("v_lshlrev_b32 v10, 2, v10")
    A("v_xor_b32 v9, v9, v10")
    A("v_lshlrev_b32 v9, 4, v9")
    A("v_lshl_add_u32 v4, v8, 10, v9")
    A("v_add_u32 v5, 7168, v4")
    A("s_mul_i32 s11, s3, 28")
    A("s_mul_i32 s12, s8, 224")
    A("s_add_u32 s12, s12, s11")
    A("s_lshl_b32 s12, s12, 10")
    A("v_add_u32 v2, s12, v2")
    A("v_add_u32 v3, s12, v3")
    A("s_lshl_b32 s13, s11, 14")
    A("s_lshl_b32 s14, s9, 7")
    A("s_add_u32 s13, s13, s14")
    A("v_add_u32 v4, s13, v4")
    A("v_add_u32 v5, s13, v5")
    for x in rot_phase("s12", 10): A(x)
    A("s_lshl_b32 s13, s12, 4")
    A("s_lshl_b32 s15, s3, 13")
    A("v_lshrrev_b32 v8, 5, v1")
    A("v_bfe_u32 v9, v1, 2, 2")
    A("v_lshl_add_u32 v8, v8, 2, v9")
    A("v_lshlrev_b32 v8, 7, v8")
    A("v_bfe_u32 v9, v1, 4, 1")
    A("v_lshl_add_u32 v8, v9, 5, v8")
    A("v_and_b32 v9, 3, v1")
    A("v_lshl_add_u32 v8, v9, 3, v8")
    A("v_bfe_u32 v9, v1, 3, 1")
    A("v_lshl_add_u32 v8, v9, 6, v8")
    A("v_add_u32 v6, s15, v8")
    A("v_xor_b32 v7, 64, v6")
    A("v_add_u32 v8, 0x10000, v6")
    A("v_add_u32 v9, 0x10000, v7")
    A("v_min_u32 v10, 6, v1")
    A("v_lshlrev_b32 v10, 2, v10")
    A("s_lshr_b32 s14, s8, 2")
    A("s_lshl_b32 s14, s14, 2")
    A("s_add_u32 s14, s14, s3")
    A("s_lshl_b32 s14, s14, 7")
    A(f"s_add_u32 s14, s14, {FH_OFF}")
    A(f"s_mov_b32 s28, {opt.get('tmo', 0x40000) * 8}")
    A(".L_wf:")
    A("ds_read_b32 v17, v16")
    A("s_sub_u32 s28, s28, 1")
    A("s_cbranch_scc1 .L_wfx")
    A("s_waitcnt lgkmcnt(0)")
    A("v_readfirstlane_b32 s29, v17")
    A("s_cmp_eq_u32 s29, 2")
    A("s_cbranch_scc1 .L_wfx")
    A("s_sleep 1")
    A("s_branch .L_wf")
    A(".L_wfx:")
    stamp(A, opt, 6)
    def trW(s):
        b = WF + (s & 1) * 8
        o = RREG[(s & 15) >> 2] + (s & 3) * 2048
        base = 8 if o >= 65536 else 6; o &= 65535
        for cb in range(2):
            A(f"ds_read_b64_tr_b16 v[{b+4*cb}:{b+4*cb+1}], v{base+cb} offset:{o}")
            A(f"ds_read_b64_tr_b16 v[{b+4*cb+2}:{b+4*cb+3}], v{base+cb} offset:{o+1024}")
    trW(0)
    A(f"s_mov_b32 s28, {opt.get('tmo', 0x40000)}")
    A(".L_hp:")
    A(f"buffer_load_dword v17, v10, {SW}, s14 offen sc1")
    A("s_sub_u32 s28, s28, 1")
    A("s_cbranch_scc1 .L_hpx")
    A("s_waitcnt vmcnt(0)")
    A("v_cmp_ne_u32 vcc, s34, v17")
    A("s_cbranch_vccz .L_hpx")
    A(f"s_sleep {opt.get('hsleep', 1)}")
    A("s_branch .L_hp")
    A(".L_hpx:")
    stamp(A, opt, 7)
    v2 = Cnt(A, "vmcnt", 63)
    def ldH(s, th):
        if th == 0:
            for x in rot_off("s16", "s17", "s12", s, 10, wrot): A(x)
        b = HF + (s % DH) * 8 + th * 4
        v2.op(f"buffer_load_dwordx4 v[{b}:{b+3}], v{2+th}, {SW}, s16 offen{hld}", ("h", s, th))
    def dmaW(s, part):
        if part == 0:
            A(f"s_add_u32 m0, s15, {RREG[(s & 15) >> 2] + (s & 3) * 2048}")
            for x in rot_off("s18", "s19", "s13", s, 14, wrot): A(x)
            v2.op(f"buffer_load_dwordx4 v4, {SD}, s18 offen lds{wld}", ("d", s))
        else:
            v2.op(f"buffer_load_dwordx4 v5, {SD}, s18 offen offset:1024 lds{wld}", ("d", s))
    for s in range(DH): ldH(s, 0); ldH(s, 1)
    NS = 28
    for s in range(NS):
        if s + 1 < NS:
            if s + 1 >= 16: v2.wait(("d", s + 1))
            trW(s + 1)
            A("s_waitcnt lgkmcnt(4)")
        else:
            A("s_waitcnt lgkmcnt(0)")
        nx = s + DH < NS; nw = s + 16 < NS
        def M(cb, th):
            c = f"v[{ACC+16*(2*th+cb)}:{ACC+16*(2*th+cb)+15}]"
            a = WF + (s & 1) * 8 + 4 * cb; b = HF + (s % DH) * 8 + th * 4
            A(f"v_mfma_f32_32x32x16_bf16 {c}, v[{a}:{a+3}], v[{b}:{b+3}], {'0' if s == 0 else c}")
        if nw: dmaW(s + 16, 0); dmaW(s + 16, 1)
        v2.wait(("h", s, 0))
        if s == 0: stamp(A, opt, 8)
        M(0, 0)
        M(1, 0)
        if nx: ldH(s + DH, 0)
        v2.wait(("h", s, 1))
        M(0, 1)
        M(1, 1)
        if nx: ldH(s + DH, 1)
    stamp(A, opt, 9)
    A("v_lshrrev_b32 v8, 5, v1")
    A("v_lshlrev_b32 v8, 10, v8")
    A("v_and_b32 v9, 31, v1")
    A("v_lshl_add_u32 v8, v9, 4, v8")
    A("v_add_u32 v8, s15, v8")
    for th in range(2):
        for cb in range(2):
            for rq in range(4):
                b = ACC + 16 * (2 * th + cb) + 4 * rq
                A(f"ds_write_b128 v8, v[{b}:{b+3}] offset:{cb*32768 + 2*rq*1024 + th*512}")
    A("s_waitcnt lgkmcnt(0)")
    A("s_barrier")
    A(".L_fin:")
    if opt.get("stamps"):
        A("s_waitcnt vmcnt(0)")
        A("s_memtime s[100:101]")
        A("s_memrealtime s[78:79]")
        A("s_waitcnt lgkmcnt(0)")
        for q in range(1, 11): A(f"s_sub_u32 s{80+2*q}, s{80+2*q}, s80")
        A("v_mov_b32 v64, s76"); A("v_mov_b32 v65, s78")
        for q in range(1, 11): A(f"v_mov_b32 v{65+q}, s{80+2*q}")
        A("s_lshl_b32 s14, s2, 3"); A("s_add_u32 s14, s14, s3"); A("s_lshl_b32 s14, s14, 6")
        A(f"s_add_u32 s14, s14, {STAMP_OFF}")
        A("v_mov_b32 v62, 0")
        A("s_mov_b64 exec, 1")
        for q in range(3): A(f"buffer_store_dwordx4 v[{64+4*q}:{67+4*q}], v62, {SW}, s14 offen offset:{16*q}")
    A(".L_end:")
    A("s_endpgm")
    return A.L

P = "parallel_sum__ssm_conv_s4__geglu_ffn__prompt"
def build(opt, fn):
    l, n = fix_hazards(gen_kf(opt), opt.get("verbose"))
    hdr = open("cdna_kernels/" + P + ".s.ref").read().split("; Override launch")[0]
    s = hdr + f"; @launch grid=(256,1,1) block=(512,1,1) lds={LDS_F}\n"
    s += '.amdgcn_target "amdgcn-amd-amdhsa--gfx950"\n'
    s += kernel_text(P + "_kernel", ["KSTART:"] + l, 256, 256)
    s += "CODE_END:\n    s_endpgm\n"
    s += kernel_desc(P + "_kernel", 256, 256)
    open(fn, "w").write(s)
    return n
if __name__ == "__main__":
    import sys, json
    opt = json.loads(sys.argv[2]) if len(sys.argv) > 2 else {}
    print("nops", build(opt, sys.argv[1]))
```

```python
import math
from fw import *

H_OFF = 0x0
XND_OFF = 0x800000
ST_OFF = 0xA00000
CS_OFF = 0xA10000
YT_OFF = 0xC00000
FH_OFF = 0xEC0000
FY_OFF = 0xED0000
EP_OFF = 0xEE0000
STAMP_OFF = 0xF00000
KD_OFF = 0x1000000
WS_SIZE = 0x1200000

LOG2E = 1.4426950408889634
def split_hi(c, bits):
    m, e = math.frexp(c); hi = math.ldexp(round(m * (1 << bits)), e - bits); return hi, c - hi

WR = 98304
CB = 131072; CH = 16384
KSZ, USZ, HSZ = 4160, 4608, 3 * 129 * 16
STL = CB + 14976
FL = CB + 16128
TB = 6656
CSL = CB + CH + 14976
RREG = [65536, 0, 98304, 32768]
LDS_F = 163840
SX, SG, SU, SD, SO, SW, SB = "s[48:51]", "s[52:55]", "s[56:59]", "s[60:63]", "s[64:67]", "s[68:71]", "s[72:75]"

class Cnt:
    def __init__(s, A, name, mx): s.A = A; s.q = []; s.done = -1; s.name = name; s.mx = mx
    def op(s, text, tag=None): s.A(text); s.q.append(tag)
    def wait(s, *tags):
        idx = max(i for i, t in enumerate(s.q) if t in tags)
        if idx > s.done:
            n = len(s.q) - 1 - idx
            s.A(f"s_waitcnt {s.name}({min(n, s.mx)})")
            s.done = idx if n <= s.mx else len(s.q) - 1 - s.mx
    def all(s):
        s.A(f"s_waitcnt {s.name}(0)"); s.done = len(s.q) - 1

def stamp(A, opt, idx, st=1):
    if opt.get("stamps") and (idx == 0 or opt.get("stamps") == st): A(f"s_memtime s[{80+2*idx}:{81+2*idx}]")

def bstamp(A, opt, h, after):
    h0 = opt.get("sb", 8)
    if opt.get("stamps") == 5 and h0 <= h < h0 + 5:
        idx = 2 * (h - h0) + after
        if 1 <= idx <= 9: A(f"s_memtime s[{80+2*idx}:{81+2*idx}]")

def cmul(L, d, x, e):
    L.append(f"v_mul_f32 v{d}, v{x}, v{e}")
    L.append(f"v_mul_f32 v{d+1}, v{x}, v{e+1}")
    L.append(f"v_fma_f32 v{d}, -v{x+1}, v{e+1}, v{d}")
    L.append(f"v_fmac_f32 v{d+1}, v{x+1}, v{e}")

def tab_waddr(base, sreg):
    L = ["v_and_b32 v60, 7, v1", "v_lshlrev_b32 v60, 4, v60", "v_lshl_add_u32 v60, v1, 7, v60", f"v_add_u32 v{base}, {sreg}, v60"]
    for j in range(1, 8): L.append(f"v_xor_b32 v{base+j}, {j<<4}, v{base}")
    return L
def kgen_addr():
    L = tab_waddr(44, "s14")
    L.append("v_lshrrev_b32 v60, 5, v1")
    L.append("v_bfe_u32 v61, v1, 3, 1")
    L.append("v_lshl_add_u32 v60, v60, 2, v61")
    L.append("v_bfe_u32 v61, v1, 2, 1")
    L.append("v_bfe_u32 v62, v1, 4, 1")
    L.append("v_lshl_add_u32 v61, v61, 1, v62")
    L.append("v_bfe_u32 v62, v1, 1, 1")
    L.append("v_lshl_add_u32 v61, v61, 1, v62")
    L.append("v_xor_b32 v61, v61, v60")
    L.append("v_lshlrev_b32 v61, 4, v61")
    L.append("v_lshl_add_u32 v61, v60, 7, v61")
    L.append("v_and_b32 v62, 1, v1")
    L.append("v_lshl_add_u32 v61, v62, 3, v61")
    L.append("v_add_u32 v52, s14, v61")
    L.append("v_xor_b32 v53, 32, v52")
    L.append("v_add_u32 v54, s15, v61")
    L.append("v_xor_b32 v55, 32, v54")
    return L

def k_dt(src):
    chi, clo = split_hi(LOG2E, 16)
    return [f"v_mul_f32 v64, {fhex(chi)}, v{src}", "v_rndne_f32 v65, v64", "v_sub_f32 v64, v64, v65", f"v_fmac_f32 v64, {fhex(clo)}, v{src}",
            "v_exp_f32 v64, v64", "v_cvt_i32_f32 v65, v65", "v_ldexp_f32 v64, v64, v65", "v_cvt_pk_bf16_f32 v64, v64, v64", "v_lshlrev_b32 v64, 16, v64"]
def k_scale(p):
    return [f"v_mul_f32 v{p}, v64, v{p}", f"v_mul_f32 v{p+1}, v64, v{p+1}", f"v_mul_f32 v{p}, {fhex(LOG2E)}, v{p}", f"v_mul_f32 v{p+1}, {fhex(1/(2*math.pi))}, v{p+1}"]
def k_direct(L, p, d, pos, t):
    if pos == 1:
        L.append(f"v_exp_f32 v{t}, v{p}"); L.append(f"v_fract_f32 v{t+1}, v{p+1}")
    else:
        L.append(f"v_mul_f32 v{t}, {fhex(float(pos))}, v{p}"); L.append(f"v_mul_f32 v{t+1}, {fhex(float(pos))}, v{p+1}")
        L.append(f"v_exp_f32 v{t}, v{t}"); L.append(f"v_fract_f32 v{t+1}, v{t+1}")
    L.append(f"v_cos_f32 v{d}, v{t+1}"); L.append(f"v_sin_f32 v{d+1}, v{t+1}")
    L.append(f"v_mul_f32 v{d}, v{d}, v{t}"); L.append(f"v_mul_f32 v{d+1}, v{d+1}, v{t}")
STG = 208
def k_rd(base, ar, off=0):
    L = []
    for ks in range(8):
        L.append(f"ds_read_b64_tr_b16 v[{base+4*ks}:{base+4*ks+1}], v{ar} offset:{off+ks*1024}")
        L.append(f"ds_read_b64_tr_b16 v[{base+4*ks+2}:{base+4*ks+3}], v{ar+1} offset:{off+ks*1024+256}")
    return L
def k_wr(L, wa, q):
    t = STG + 8 * (q & 1)
    L.append(f"ds_write_b128 v{wa+q}, v[{t}:{t+3}]"); L.append(f"ds_write_b128 v{wa+4+q}, v[{t+4}:{t+7}]")
def kgen_x(p, wa):
    L = k_dt(p + 6) + k_scale(p)
    L.append(f"v_mul_f32 v66, v64, v{p+2}"); L.append(f"v_mul_f32 v67, v64, v{p+3}")
    k_direct(L, p, 70, 8, 72)
    cmul(L, 74, p + 4, 66)
    cmul(L, 72, 70, 70)
    cmul(L, 76, 74, 70)
    cur = [74, 76]; nxt = [78, 80]
    for i in range(0, 32, 2):
        if i + 2 < 32:
            cmul(L, nxt[0], cur[0], 72); cmul(L, nxt[1], cur[1], 72)
        t = STG + 8 * ((i >> 3) & 1) + ((i >> 1) & 3)
        L.append(f"v_cvt_pk_bf16_f32 v{t}, v{cur[0]}, v{cur[1]}")
        L.append(f"v_cvt_pk_bf16_f32 v{t+4}, v{cur[0]+1}, v{cur[1]+1}")
        if i & 7 == 6: k_wr(L, wa, i >> 3)
        cur, nxt = nxt, cur
    return L
def kgen_y(p):
    L = k_scale(p)
    lay = {0: [0,1,2,3,4,5,6,7,512,516,520,1024,1032,1536,1544,1544], 1: [256,256,258,260,260,260,262,264,768,772,776,1280,1288,1792,1800,1800]}
    pairs = [(q, k, (lay[k >> 1][4*q + 2*(k & 1)], lay[k >> 1][4*q + 2*(k & 1) + 1])) for q in range(4) for k in range(4)]
    reg = {}; nreg = [66]
    def new(q):
        reg[q] = nreg[0]; nreg[0] += 2; return reg[q]
    k_direct(L, p, new(1), 1, 124)
    k_direct(L, p, new(256), 256, 126)
    plan = [(2,1,1),(512,256,256),(3,2,1),(4,2,2),(258,256,2),(768,512,256),(260,256,4),(5,4,1),(6,4,2),(8,4,4),(7,4,3),(1024,512,512),(262,256,6),(264,256,8),
            (516,512,4),(520,512,8),(772,768,4),(776,768,8),(1280,1024,256),(1536,1024,512),(1032,1024,8),(1792,1024,768),(1288,1280,8),(1544,1536,8),(1800,1792,8)]
    def flush(avail, mx):
        n = 0
        while pairs and n < mx and all(z == 0 or z in avail for z in pairs[0][2]):
            q, k, (a, b) = pairs.pop(0)
            t = STG + 8 * (q & 1) + k
            L.append(f"v_cvt_pk_bf16_f32 v{t}, {'1.0' if a == 0 else 'v%d' % reg[a]}, v{reg[b]}")
            L.append(f"v_cvt_pk_bf16_f32 v{t+4}, {'0' if a == 0 else '-v%d' % (reg[a]+1)}, -v{reg[b]+1}")
            if k == 3: k_wr(L, 44, q)
            n += 1
    for n, (q, a, b) in enumerate(plan):
        assert a + b == q
        av = set(reg)
        cmul(L, new(q), reg[a], reg[b])
        flush(av, 1)
    flush(set(reg), 99)
    assert nreg[0] <= 124 and not pairs
    return L
XF0, XF1, YF0, YF1 = 128, 224, 160, 68
def k_zero():
    return ["v_lshlrev_b32 v60, 4, v1", f"v_add_u32 v61, {KSZ}, v60", "v_subrev_u32 v63, 512, v60", "v_cmp_gt_u32 vcc, 32, v1", "v_mov_b32 v64, 0", "v_mov_b32 v65, 0", "v_cndmask_b32 v61, v63, v61, vcc",
         "v_subrev_u32 v63, 36, v1", "v_min_u32 v63, 2, v63", f"v_mul_u32_u24 v63, {129*16}, v63", "v_cmp_gt_u32 vcc, 36, v1", f"v_add_u32 v63, {KSZ+USZ}, v63", "v_mov_b32 v66, 0",
         "v_cndmask_b32 v61, v63, v61, vcc", "v_add_u32 v61, s13, v61", "v_and_b32 v62, 1, v1", "v_cmp_eq_u32 vcc, 0, v62", "v_add_u32 v63, s13, v60", "v_mov_b32 v67, 0",
         "ds_write_b128 v61, v[64:67]"]
def k_mf(hf):
    x, y = ((XF0, YF0), (XF1, YF1))[hf]
    return [f"v_mfma_f32_32x32x16_bf16 v[192:207], v[{y+4*ks}:{y+3+4*ks}], v[{x+4*ks}:{x+3+4*ks}], {'0' if ks == 0 and hf == 0 else 'v[192:207]'}" for ks in range(8)]
def k_tail(opt):
    L = []
    a = lambda r: f"v{192+r}"
    pk = lambda d, lo, hi: L.append(f"v_cvt_pk_bf16_f32 v{d}, {lo}, {hi}")
    wr = lambda q: L.append(f"ds_write_b128 v63, v[{104+4*q}:{107+4*q}] offset:{64+1024*q}")
    pk(104, a(0), a(1)); pk(105, a(2), a(3)); pk(106, a(4), a(5)); pk(107, a(6), a(7)); wr(0)
    pk(108, a(8), a(8)); pk(109, a(8), a(9)); pk(110, a(9), a(9)); pk(111, a(10), a(10)); wr(1)
    for (z, b) in ((11, 112), (13, 116)):
        L.append(f"v_cndmask_b32 v62, {a(z+1)}, {a(z)}, vcc")
        pk(b, a(z), a(z)); L.append(f"v_mov_b32 v{b+1}, v{b}"); pk(b+2, "v62", a(z+1)); pk(b+3, a(z+1), a(z+1)); wr((b - 104) // 4)
    if opt.get("kdump"):
        L.append("s_lshl_b32 s15, s12, 12")
        L.append(f"s_add_u32 s15, s15, {KD_OFF}")
        for q in range(4): L.append(f"buffer_store_dwordx4 v[{104+4*q}:{107+4*q}], v60, {SW}, s15 offen offset:{1024*q}")
    return L
def rot_phase(dst, sh):
    return [f"s_lshl_b32 {dst}, s7, 1", f"s_add_u32 {dst}, {dst}, s9", f"s_and_b32 {dst}, {dst}, 7", f"s_mul_i32 {dst}, {dst}, 7", f"s_lshr_b32 {dst}, {dst}, 1", f"s_lshl_b32 {dst}, {dst}, {sh}"]
def rot_off(dst, tmp, r, s, sh, on=True):
    if not on: return [f"s_mov_b32 {dst}, {s << sh}"]
    return [f"s_add_u32 {dst}, {r}, {s << sh}", f"s_sub_u32 {tmp}, {r}, {(28 - s) << sh}", f"s_min_u32 {dst}, {dst}, {tmp}"]

VF, VG, VH, VX, VY, VO = 10, 11, 12, 13, 14, 15
XR = 24; UD = 232
def conv_addr():
    L = []; A = L.append
    A("v_lshrrev_b32 v16, 5, v1")
    A(f"v_lshlrev_b32 v{VF}, 6, v16")
    A("v_and_b32 v17, 1, v1")
    A(f"v_lshl_add_u32 v{VF}, v17, 5, v{VF}")
    A("v_bfe_u32 v17, v1, 4, 1")
    A(f"v_lshl_add_u32 v{VF}, v17, 4, v{VF}")
    A("v_bfe_u32 v18, v1, 1, 1")
    A(f"v_lshl_add_u32 v{VF}, v18, 3, v{VF}")
    A("v_bfe_u32 v18, v1, 2, 2")
    A("v_lshlrev_b32 v19, 3, v18")
    A(f"v_sub_u32 v{VF}, v{VF}, v19")
    A("s_add_u32 s15, s13, 32")
    A(f"v_add_u32 v{VF}, s15, v{VF}")
    A("v_and_b32 v19, 3, v1")
    A("v_lshl_add_u32 v19, v17, 2, v19")
    A("v_sub_u32 v20, v19, v16")
    A("v_add_u32 v20, 2, v20")
    A("v_lshrrev_b32 v21, 1, v20")
    A(f"v_lshlrev_b32 v{VG}, 7, v21")
    A("v_and_b32 v20, 1, v20")
    A(f"v_lshl_add_u32 v{VG}, v20, 4, v{VG}")
    A(f"v_lshl_add_u32 v{VG}, v18, 5, v{VG}")
    A(f"s_add_u32 s15, s13, {KSZ}")
    A(f"v_add_u32 v{VG}, s15, v{VG}")
    A(f"v_mul_u32_u24 v{VH}, 129, v18")
    A(f"v_lshl_add_u32 v{VH}, v19, 1, v{VH}")
    A(f"v_add_u32 v{VH}, v{VH}, v16")
    A(f"s_add_u32 s15, s13, {KSZ+USZ-129*16}")
    A(f"v_lshl_add_u32 v{VH}, v{VH}, 4, s15")
    A("v_and_b32 v20, 1, v18")
    A("v_mul_u32_u24 v20, 3, v20")
    A("v_xor_b32 v20, s11, v20")
    A("v_lshrrev_b32 v21, 1, v18")
    A(f"v_lshlrev_b32 v{VX}, 9, v20")
    A("v_lshrrev_b32 v22, 1, v19")
    A(f"v_lshl_add_u32 v{VX}, v22, 7, v{VX}")
    A("v_and_b32 v22, 1, v19")
    A(f"v_lshl_add_u32 v{VX}, v22, 4, v{VX}")
    A(f"v_lshl_add_u32 v{VX}, v16, 3, v{VX}")
    A(f"v_lshl_add_u32 v{VX}, v21, 2, v{VX}")
    A(f"s_add_u32 s15, s13, {KSZ+512}")
    A(f"v_add_u32 v{VX}, s15, v{VX}")
    A(f"v_lshlrev_b32 v{VY}, 9, v20")
    A(f"v_lshl_add_u32 v{VY}, v19, 6, v{VY}")
    A(f"v_lshl_add_u32 v{VY}, v16, 5, v{VY}")
    A(f"v_lshl_add_u32 v{VY}, v21, 4, v{VY}")
    A("v_and_b32 v16, 15, v1")
    A("v_lshrrev_b32 v17, 4, v1")
    A(f"v_lshlrev_b32 v{VO}, 10, v16")
    A(f"v_lshl_add_u32 v{VO}, v17, 4, v{VO}")
    A("s_lshl_b32 s24, s8, 2")
    A("s_add_u32 s24, s24, s10")
    A("s_lshl_b32 s24, s24, 14")
    A("s_lshl_b32 s25, s9, 7")
    A("s_add_u32 s24, s24, s25")
    A("v_lshrrev_b32 v16, 1, v1")
    A("v_lshlrev_b32 v16, 14, v16")
    A("v_and_b32 v17, 1, v1")
    A("v_lshl_add_u32 v16, v17, 6, v16")
    A("s_lshr_b32 s26, s12, 2")
    A("s_lshl_b32 s26, s26, 7")
    A("s_and_b32 s27, s12, 3")
    A("s_lshl_b32 s27, s27, 4")
    A("s_add_u32 s26, s26, s27")
    A(f"s_add_u32 s26, s26, {XND_OFF}")
    A("v_min_u32 v18, 31, v1")
    A("v_lshlrev_b32 v18, 2, v18")
    return L

WW = [5]
def weight(it):
    if isinstance(it, tuple): return 4 if it[0] == "vm" else 0
    if it.startswith("v_mfma"): return 8
    if it.startswith(TRANS): return 2
    if it.startswith("s_waitcnt lgkm"): return 6
    if it.startswith("ds_write_b128"): return WW[0]
    if it.startswith("s_"): return 0.5
    return 1

def ln_code(A, opt, srds):
    A("v_lshrrev_b32 v8, 3, v1")
    A("v_and_b32 v9, 7, v1")
    A("v_lshlrev_b32 v10, 12, v8")
    A("v_lshl_add_u32 v10, v9, 4, v10")
    A("s_and_b32 s12, s3, 3")
    A("s_lshr_b32 s13, s3, 2")
    A("s_lshl_b32 s10, s8, 16")
    A("s_lshl_b32 s11, s12, 10")
    A("s_add_u32 s10, s10, s11")
    A("s_lshl_b32 s11, s13, 15")
    A("s_add_u32 s10, s10, s11")
    A("s_mov_b32 s50, 0x200000"); A("s_mov_b32 s51, 0x20000")
    A(f"s_mov_b32 s15, {EP_OFF}")
    A("s_waitcnt lgkmcnt(0)")
    A("s_mov_b64 s[48:49], s[16:17]")
    X = 128; F = 64
    for q in range(8): A(f"buffer_load_dwordx4 v[{X+4*q}:{X+4*q+3}], v10, {SX}, s10 offen offset:{q*128}")
    A("s_load_dword s34, s[46:47], s15")
    for x in srds(): A(x)
    RS = 1056
    A(f"s_mul_i32 s10, s12, {16*RS}")
    A(f"s_mul_i32 s11, s13, {RS}")
    A("s_add_u32 s11, s11, s10")
    A(f"v_mul_u32_u24 v11, {2*RS}, v8")
    A("v_lshl_add_u32 v11, v9, 4, v11")
    A("v_add_u32 v11, s11, v11")
    A("v_bfe_u32 v12, v1, 2, 2")
    A("v_and_b32 v13, 1, v1")
    A("v_lshl_add_u32 v12, v12, 1, v13")
    A(f"v_mul_u32_u24 v12, {RS}, v12")
    A("v_lshrrev_b32 v13, 4, v1")
    A("v_lshl_add_u32 v12, v13, 4, v12")
    A("v_bfe_u32 v13, v1, 1, 1")
    A("v_lshl_add_u32 v12, v13, 3, v12")
    A("s_lshl_b32 s11, s13, 9")
    A("s_add_u32 s10, s10, s11")
    A("v_add_u32 v12, s10, v12")
    A("v_lshlrev_b32 v13, 5, v8")
    A("s_lshl_b32 s10, s8, 9")
    A("s_lshl_b32 s11, s13, 8")
    A("s_add_u32 s10, s10, s11")
    A("s_lshl_b32 s11, s12, 3")
    A("s_add_u32 s10, s10, s11")
    A(f"s_add_u32 s10, s10, {ST_OFF}")
    A("s_lshl_b32 s11, s8, 16")
    A("s_lshl_b32 s12, s12, 14")
    A("s_add_u32 s11, s11, s12")
    A("s_lshl_b32 s13, s13, 13")
    A("s_add_u32 s11, s11, s13")
    A(f"s_add_u32 s11, s11, {XND_OFF}")
    A("s_mov_b32 s14, 0x3f803f80")
    def red8(r):
        A(f"v_add_f32_dpp v{r}, v{r}, v{r} quad_perm:[1,0,3,2] row_mask:0xf bank_mask:0xf")
        A(f"v_add_f32_dpp v{r}, v{r}, v{r} quad_perm:[2,3,0,1] row_mask:0xf bank_mask:0xf")
        A(f"v_add_f32_dpp v{r}, v{r}, v{r} row_half_mirror row_mask:0xf bank_mask:0xf")
    for r in range(16, 22): A(f"v_mov_b32 v{r}, 0")
    stamp(A, opt, 1)
    for q in range(32):
        if q % 4 == 0: A(f"s_waitcnt vmcnt({7 - q // 4})")
        A(f"v_dot2c_f32_bf16 v{16+(q&1)}, s14, v{X+q}")
        A(f"v_lshlrev_b32 v{F+2*q}, 16, v{X+q}")
        A(f"v_and_b32 v{F+2*q+1}, 0xffff0000, v{X+q}")
    stamp(A, opt, 2)
    A("v_add_f32 v16, v16, v17")
    red8(16)
    A(f"v_mul_f32 v16, {fhex(-1/512)}, v16")
    for q in range(32):
        A(f"v_pk_add_f32 v[{F+2*q}:{F+2*q+1}], v[{F+2*q}:{F+2*q+1}], v[16:17] op_sel_hi:[1,0]")
    for q in range(32):
        a = 18 + 2 * (q & 1)
        A(f"v_pk_fma_f32 v[{a}:{a+1}], v[{F+2*q}:{F+2*q+1}], v[{F+2*q}:{F+2*q+1}], v[{a}:{a+1}]")
    A("v_pk_add_f32 v[18:19], v[18:19], v[20:21]")
    A("v_cvt_pk_bf16_f32 v17, v16, v16")
    A("v_add_f32 v18, v18, v19")
    red8(18)
    A("s_waitcnt lgkmcnt(0)")
    A("s_add_u32 s34, s34, 2")
    A("s_or_b32 s34, s34, 1")
    A(f"v_mul_f32 v18, {fhex(1/512)}, v18")
    A("v_cvt_pk_bf16_f32 v18, v18, v18")
    A("v_and_b32 v18, 0xffff0000, v18")
    A(f"v_add_f32 v18, {fhex(1e-5)}, v18")
    A("v_cvt_pk_bf16_f32 v18, v18, v18")
    A("v_and_b32 v18, 0xffff0000, v18")
    A("v_sqrt_f32 v18, v18")
    A("v_and_b32 v19, 0xffff0000, v17")
    A("v_mov_b32 v23, s34")
    A("v_cvt_pk_bf16_f32 v22, v19, v18")
    A("v_sub_f32 v19, v19, v16")
    A("v_and_b32 v20, 0xffff0000, v22")
    A("v_rcp_f32 v20, v20")
    A("s_mov_b32 exec_lo, 0x01010101"); A("s_mov_b32 exec_hi, 0x01010101")
    A(f"buffer_store_dwordx2 v[22:23], v13, {SW}, s10 offen sc1")
    A("s_mov_b64 exec, -1")
    A("v_mul_f32 v21, v19, v20")
    for q in range(32):
        A(f"v_pk_fma_f32 v[{F+2*q}:{F+2*q+1}], v[{F+2*q}:{F+2*q+1}], v[20:21], v[20:21] op_sel:[0,0,1] op_sel_hi:[1,0,1]")
    for q in range(32):
        A(f"v_cvt_pk_bf16_f32 v{X+q}, v{F+2*q}, v{F+2*q+1}")
        if q & 3 == 3: A(f"ds_write_b128 v11, v[{X+q-3}:{X+q}] offset:{(q>>2)*128}")
    A("v_lshlrev_b32 v13, 4, v1")
    A("s_waitcnt lgkmcnt(0)")
    A("s_barrier")
    stamp(A, opt, 3)
    for blk in range(8):
        b = 64 + 4 * blk
        A(f"ds_read_b64_tr_b16 v[{b}:{b+1}], v12 offset:{blk*64}")
        A(f"ds_read_b64_tr_b16 v[{b+2}:{b+3}], v12 offset:{blk*64+8*RS}")
        if blk == 6: A("s_waitcnt lgkmcnt(12)")
    for blk in range(8):
        A(f"s_waitcnt lgkmcnt({14-2*blk})")
        A(f"buffer_store_dwordx4 v[{64+4*blk}:{67+4*blk}], v13, {SW}, s11 offen offset:{(blk&3)*1024} sc1")
        if blk == 3: A("s_add_u32 s11, s11, 4096")

def gen_kf(opt):
    A = Asm()
    ld = opt.get("ldflag", "")
    tmo = opt.get("tmo", 0x40000)
    def srds():
        return ["s_mov_b64 s[60:61], s[40:41]", f"s_mov_b32 s62, {1792*1024}", "s_mov_b32 s63, 0x20000",
                "s_mov_b64 s[64:65], s[42:43]", "s_mov_b32 s66, 0x200000", "s_mov_b32 s67, 0x20000",
                "s_mov_b64 s[68:69], s[46:47]", f"s_mov_b32 s70, {WS_SIZE}", "s_mov_b32 s71, 0x20000",
                "s_mov_b64 s[72:73], s[44:45]", "s_mov_b32 s74, 256", "s_mov_b32 s75, 0x20000"]
    A("s_cmp_ge_u32 s2, 256")
    A("s_cbranch_scc1 .L_end")
    A("s_load_dwordx16 s[16:31], s[0:1], 0")
    A("s_load_dwordx16 s[32:47], s[0:1], 64")
    stamp(A, opt, 0)
    if opt.get("stamps"): A("s_memrealtime s[76:77]")
    A("v_lshrrev_b32 v2, 6, v0")
    A("v_and_b32 v1, 63, v0")
    A("v_readfirstlane_b32 s3, v2")
    A("s_and_b32 s6, s2, 7")
    A("s_lshr_b32 s7, s2, 3")
    A("s_lshr_b32 s4, s6, 2")
    A("s_lshl_b32 s4, s4, 2")
    A("s_and_b32 s5, s7, 3")
    A("s_add_u32 s4, s4, s5")
    A("s_lshl_b32 s8, s6, 2")
    A("s_add_u32 s8, s8, s5")
    A("s_lshr_b32 s9, s7, 2")
    A("s_and_b32 s5, s6, 3")
    A("s_cmp_ge_u32 s7, 28")
    A("s_cbranch_scc1 .L_ln")
    A("s_cmp_lt_u32 s3, 4")
    A("s_cbranch_scc0 .L_help")
    if opt.get("codepf", 1):
        A("s_getpc_b64 s[78:79]")
        A(".L_pc:")
        A("s_sub_u32 s78, s78, .L_pc-KSTART")
        A("s_subb_u32 s79, s79, 0")
        A("s_lshl_b32 s10, s9, 2")
        A("s_add_u32 s10, s10, s3")
        A("s_lshl_b32 s10, s10, 11")
        A("v_lshl_add_u32 v2, v1, 5, s10")
        A("v_min_u32 v2, CODE_END-KSTART, v2")
        A("global_load_dword v14, v2, s[78:79]")
    A("s_branch .L_w03")
    A(".L_help:")
    A("s_sub_u32 s10, s3, 4")
    A("s_and_b32 s11, s10, 1")
    A("s_lshr_b32 s12, s10, 1")
    A("v_lshrrev_b32 v8, 3, v1")
    A("v_and_b32 v9, 7, v1")
    A("v_lshrrev_b32 v10, 4, v1")
    g = opt.get("rot", "s9")
    if g == "s9": A("s_add_u32 s79, s4, s9")
    elif g == 0: A("s_mov_b32 s79, s4")
    else:
        A(f"s_and_b32 s79, s9, {g[0]}"); A(f"s_mul_i32 s79, s79, {g[1]}"); A("s_add_u32 s79, s79, s4")
    A("s_mul_i32 s101, s5, 7")
    A("s_add_u32 s101, s101, s9")
    A(f"s_lshl_b32 s13, s12, 14")
    A(f"s_add_u32 s13, s13, {CB}")
    A("s_lshl_b32 s100, s10, 13")
    A("s_mov_b32 s50, 0x200000"); A("s_mov_b32 s51, 0x20000")
    A("s_cmp_eq_u32 s11, 0")
    A("s_cbranch_scc0 .L_kw")
    if opt.get("dprio", 0): A(f"s_setprio {opt['dprio']}")
    vm = Cnt(A, "vmcnt", 63)
    A("v_xor_b32 v11, v9, v10")
    A("v_lshlrev_b32 v11, 4, v11")
    A("v_lshl_add_u32 v2, v8, 10, v11")
    A("v_xor_b32 v3, 64, v2")
    A("v_add_u32 v3, 7168, v3")
    A("v_add_u32 v4, 14336, v2")
    A("v_add_u32 v5, 14336, v3")
    A("s_lshl_b32 s78, s4, 2")
    A("s_add_u32 s78, s78, s10")
    A("s_lshl_b32 s78, s78, 16")
    A("v_and_b32 v10, 1, v10")
    A("v_lshlrev_b32 v11, 1, v10")
    A("v_xor_b32 v11, v9, v11")
    A("v_lshlrev_b32 v11, 4, v11")
    A("v_lshl_add_u32 v12, s10, 3, v8")
    A("v_mul_u32_u24 v12, 3584, v12")
    A("v_add_u32 v6, v12, v11")
    A("v_xor_b32 v7, 64, v6")
    A(f"v_add_u32 v32, {8*3584-1024}, v6")
    A(f"v_add_u32 v33, {8*3584-1024}, v7")
    A(f"s_mov_b32 s54, {512*3584}"); A("s_mov_b32 s55, 0x20000")
    A(f"s_mov_b32 s58, {512*3584}"); A("s_mov_b32 s59, 0x20000")
    A("s_lshl_b32 s101, s101, 7")
    A(f"s_mov_b32 s15, {EP_OFF}")
    def wdv():
        return ["v_lshlrev_b32 v10, 2, v10", "v_xor_b32 v9, v9, v10", "v_lshlrev_b32 v9, 4, v9", "v_lshl_add_u32 v8, v8, 10, v9", "v_add_u32 v9, 7168, v8"]
    for x in wdv(): A(x)
    A("s_lshr_b32 s14, s100, 2")
    A(f"s_add_u32 s14, s14, {WR}")
    A("s_cmp_ge_u32 s7, 28")
    A("s_waitcnt lgkmcnt(0)")
    A("s_mov_b64 s[52:53], s[36:37]")
    A("s_mov_b64 s[56:57], s[38:39]")
    A("s_mov_b64 s[48:49], s[16:17]")
    A("s_cbranch_scc1 .L_daux")
    stamp(A, opt, 1, 2)
    def dx(i, e, tb):
        L = []
        if e == 0 and tb == 0:
            L += [f"s_add_u32 s18, s79, {i}", "s_and_b32 s18, s18, 7", "s_lshl_b32 s18, s18, 7", "s_add_u32 s18, s18, s78"]
        else: L.append("s_add_u32 s18, s18, 32768")
        L.append(f"s_add_u32 m0, s100, {(i % 3) * 32768 + e * 8192 + tb * 4096}")
        for q in range(4): L.append(("vm", f"buffer_load_dwordx4 v{2+q}, {SX}, s18 offen" + (f" offset:{q*1024}" if q else "") + f" lds{ld}", ("x", i)))
        return L
    def dw(h):
        if h & 1: L = [f"s_add_u32 s19, s19, {32*3584}"]
        else: L = [f"s_add_u32 s19, s79, {h >> 1}", "s_and_b32 s19, s19, 7", f"s_mul_i32 s19, s19, {64*3584}", "s_add_u32 s19, s19, s101"]
        L += [f"s_add_u32 m0, s14, {(h & 3) * 8192}",
              ("vm", f"buffer_load_dwordx4 v6, {SG}, s19 offen lds{ld}", ("w", h)), ("vm", f"buffer_load_dwordx4 v32, {SG}, s19 offen offset:1024 lds{ld}", ("w", h)),
              f"s_add_u32 m0, s14, {(h & 3) * 8192 + 2048}",
              ("vm", f"buffer_load_dwordx4 v7, {SU}, s19 offen lds{ld}", ("w", h)), ("vm", f"buffer_load_dwordx4 v33, {SU}, s19 offen offset:1024 lds{ld}", ("w", h))]
        return L
    wld = opt.get("wld", "")
    wrot = opt.get("wrot", 1)
    def dd2(s):
        o = RREG[s >> 2] + (s & 3) * 2048
        L = rot_off("s47", "s20", "s46", s, 14, wrot)
        for e in range(2):
            if e: L.append(f"s_add_u32 s47, s47, {28 * 16384}")
            L += [f"s_add_u32 m0, s100, {o + e * 8192}", ("vm", f"buffer_load_dwordx4 v8, {SD}, s47 offen lds{wld}", ("d", s)),
                  ("vm", f"buffer_load_dwordx4 v9, {SD}, s47 offen offset:1024 lds{wld}", ("d", s))]
        return L
    def emit(c, it):
        if isinstance(it, tuple):
            if it[0] == "vm": c.op(it[1], it[2])
            elif it[0] == "vmwait": c.wait(*it[1:])
            elif it[0] == "call": it[1]()
            else: raise Exception(it)
        else: A(it)
    def late_setup(tagload=True, wd=True):
        return (["s_load_dword s34, s[46:47], s15"] if tagload else []) + srds() + \
               (["s_mul_i32 s46, s10, 28", "s_lshl_b32 s46, s46, 14", "s_lshl_b32 s47, s9, 7", "s_add_u32 s46, s46, s47", "v_add_u32 v8, s46, v8", "v_add_u32 v9, s46, v9"] + rot_phase("s46", 14) if wd else []) + \
               ["s_lshl_b32 s15, s2, 2", "s_load_dword s17, s[32:33], s15", "s_lshl_b32 s15, s2, 1", "s_add_u32 s12, s12, s15"]
    tagfix = ["s_add_u32 s34, s34, 2", "s_or_b32 s34, s34, 1"]
    S = []
    for h in range(16):
        if h & 1 == 0:
            xs = [(h - 4 if h >= 6 else 1 if h == 4 else -1, h, dx(h >> 1, e, tb)) for e in range(2) for tb in range(2)]
            w = [(h - 3 if h >= 4 else -1, h, dw(h))]
            S += (w + xs) if h == 0 or opt.get("wfirst") else (xs + w)
        else: S.append((h - 3 if h >= 4 else -1, h, dw(h)))
    for s_ in range(8): S.append((12 if s_ < 4 else 14, 99, dd2(s_)))
    quota = opt.get("quota", [8, 4, 4, 4, 4])
    extra = late_setup() + conv_addr()
    for h in range(-1, 16):
        if h >= 0:
            if h == 0: stamp(A, opt, 8, 2)
            if opt.get("stamps") == 3 and h in (2, 4, 6, 8): stamp(A, opt, h - 1, 3)
            if opt.get("stamps") == 4 and h in (9, 11, 13, 15): stamp(A, opt, h - 8, 4)
            vm.wait(("w", h), ("x", h >> 1))
            if h == 0: stamp(A, opt, 9, 2); stamp(A, opt, 1)
            if opt.get("stamps") == 3 and h in (2, 4, 6, 8): stamp(A, opt, h, 3)
            if opt.get("stamps") == 4 and h in (9, 11, 13, 15): stamp(A, opt, h - 7, 4)
            bstamp(A, opt, h, 0)
            A("s_barrier")
            bstamp(A, opt, h, 1)
            if h == 0: stamp(A, opt, 2)
        q = quota[h + 1] if h + 1 < len(quota) else quota[-1]
        n = 0
        while True:
            c = [k for k, t in enumerate(S) if t[0] <= h]
            if not c: break
            k = c[0]
            if n >= q and S[k][1] > h + 1 and h < 15: break
            for it in S.pop(k)[2]: emit(vm, it)
            n += 1
            if h == -1 and n in (1, 3, 5, 6, 7, 8): stamp(A, opt, {1: 2, 3: 3, 5: 4, 6: 5, 7: 6, 8: 7}[n], 2)
        if h == -1 or h >= opt.get("xslice", 0):
            for _ in range(len(late_setup()) if h == -1 else opt.get("xper", 12)):
                if extra: A(extra.pop(0))
        if h == 1:
            A("s_waitcnt lgkmcnt(0)")
            for x in tagfix: A(x)
    assert not S and not extra
    A("s_barrier")
    stamp(A, opt, 3)
    A(".L_dpost:")
    for s_ in range(8, 16):
        for it in dd2(s_): A(it if isinstance(it, str) else it[1])
    A("s_lshl_b32 s15, s10, 1")
    A(f"s_add_u32 s15, s15, {FL+40}")
    A("v_mov_b32 v16, s15")
    A(f"s_mov_b32 s28, {tmo * 8}")
    A(".L_kf:")
    A("ds_read_b32 v17, v16")
    A("s_sub_u32 s28, s28, 1")
    A("s_cbranch_scc1 .L_conv")
    A("s_waitcnt lgkmcnt(0)")
    A("v_readfirstlane_b32 s15, v17")
    A("s_cmp_eq_u32 s15, 0")
    A("s_cbranch_scc0 .L_conv")
    A("s_sleep 1")
    A("s_branch .L_kf")
    A(".L_daux:")
    for x in late_setup(False) + conv_addr(): A(x)
    for h in range(16):
        A("s_barrier")
        if h & 1:
            for it in dd2(h >> 1): A(it if isinstance(it, str) else it[1])
    A("s_barrier")
    stamp(A, opt, 5)
    A("s_branch .L_dpost")
    A(".L_ln:")
    ln_code(A, opt, srds)
    A("s_waitcnt vmcnt(0)")
    stamp(A, opt, 4)
    A("s_barrier")
    A("s_cmp_lt_u32 s3, 4")
    A("s_cbranch_scc0 .L_help")
    A("s_cmp_lg_u32 s3, 0")
    A("s_cbranch_scc1 .L_w03")
    A("s_lshl_b32 s13, s8, 2")
    A("v_mov_b32 v13, 0")
    A("v_mov_b32 v16, 1")
    A("s_mov_b64 exec, 1")
    A(f"buffer_store_dword v16, v13, {SB}, s13 offen sc1")
    A("s_mov_b64 exec, -1")
    A("s_branch .L_w03")
    A(".L_auxbar:")
    for _ in range(17): A("s_barrier")
    stamp(A, opt, 5)
    A("s_branch .L_g2")
    A(".L_kw:")
    if opt.get("kprio", 0): A(f"s_setprio {opt['kprio']}")
    vk = Cnt(A, "vmcnt", 63)
    A("s_lshl_b32 s14, s2, 1")
    A("s_add_u32 s14, s14, s12")
    A("s_lshl_b32 s15, s14, 1")
    A("v_mov_b32 v35, s15")
    A("s_lshl_b32 s14, s14, 8")
    A("v_lshl_add_u32 v34, v1, 1, s14")
    for r in range(36, 41): A(f"v_mov_b32 v{r}, 0")
    A(f"s_add_u32 s14, s13, {TB}")
    A(f"s_mov_b32 s15, {EP_OFF}")
    A("s_waitcnt lgkmcnt(0)")
    vk.op("global_load_short_d16_hi v36, v35, s[30:31]", "par")
    for hf in range(2):
        for k in range(2): vk.op(f"global_load_short_d16_hi v{37+2*hf+k}, v34, s[{18+2*k}:{19+2*k}]" + (" offset:128" if hf else ""), ("par", hf))
    A("s_mov_b64 s[48:49], s[16:17]")
    A("s_cmp_ge_u32 s7, 28")
    A("s_cbranch_scc1 .L_ktag")
    A("s_load_dword s34, s[46:47], s15")
    A(".L_ktag:")
    A("v_bfe_u32 v4, v1, 4, 1")
    A("v_lshlrev_b32 v2, 11, v4")
    A("v_lshrrev_b32 v4, 5, v1")
    A("v_lshl_add_u32 v2, v4, 10, v2")
    A("v_bfe_u32 v4, v1, 2, 2")
    A("v_lshl_add_u32 v2, v4, 7, v2")
    A("v_and_b32 v4, 3, v1")
    A("v_lshl_add_u32 v2, v4, 3, v2")
    A("v_bfe_u32 v4, v1, 3, 2")
    A("v_lshl_add_u32 v2, v4, 5, v2")
    A(f"v_add_u32 v2, {WR}, v2")
    A("s_lshl_b32 s15, s12, 6")
    A("v_xor_b32 v2, s15, v2")
    A("v_xor_b32 v3, 32, v2")
    for r in range(56, 60): A(f"v_mov_b32 v{r}, 0x3f803f80")
    A("s_lshl_b32 s35, s101, 13")
    A("s_lshl_b32 s15, s12, 9")
    A("s_add_u32 s35, s35, s15")
    A(f"s_add_u32 s35, s35, {CS_OFF}")
    A("s_lshl_b32 s78, s4, 11")
    A("s_lshl_b32 s15, s12, 10")
    A("s_add_u32 s78, s78, s15")
    A(f"s_add_u32 s78, s78, {ST_OFF}")
    A("v_lshlrev_b32 v4, 3, v1")
    A("v_lshlrev_b32 v5, 4, v1")
    A("s_lshl_b32 s15, s12, 9")
    A(f"s_add_u32 s15, s15, {STL}")
    A("v_add_u32 v6, s15, v4")
    A("s_lshl_b32 s15, s12, 8")
    A(f"s_add_u32 s15, s15, {CSL}")
    A("v_lshl_add_u32 v7, v1, 2, s15")
    A("s_lshl_b32 s15, s12, 14")
    A("s_add_u32 s15, s15, 65536")
    for x in kgen_addr(): A(x)
    kx = late_setup(False, False) + conv_addr()
    for _ in range(opt.get("kearly", 99)):
        if kx: A(kx.pop(0))
    A("v_and_b32 v60, 56, v4")
    A(f"v_add_u32 v60, {FL}, v60")
    A("v_mov_b32 v62, 0"); A("v_mov_b32 v63, 0")
    A("ds_write_b64 v60, v[62:63]")
    stamp(A, opt, 1)
    nlab = [0]
    def mainonly(items):
        nlab[0] += 1
        return ["s_cmp_ge_u32 s7, 28", f"s_cbranch_scc1 .L_mo{nlab[0]}"] + items + [f".L_mo{nlab[0]}:"]
    def cspart(h):
        R = []; M = []
        for k in range(2):
            for t in range(2):
                b = 192 + 8 * k + 4 * t; o = h * 8192 + k * 4096
                R += [f"ds_read_b64_tr_b16 v[{b}:{b+1}], v{2+t} offset:{o}", f"ds_read_b64_tr_b16 v[{b+2}:{b+3}], v{2+t} offset:{o+512}"]
                c = f"v[{160+16*t}:{175+16*t}]"
                M.append(f"v_mfma_f32_32x32x16_bf16 {c}, v[56:59], v[{b}:{b+3}], {'0' if h == 0 and k == 0 else c}")
        return R, M
    GR = 20; SR = 100
    def gloads(c):
        for k in range(8):
            c(f"buffer_load_dwordx2 v[{GR+2*k}:{GR+2*k+1}], v4, {SW}, s35 offen" + (f" offset:{(k&3)*1024}" if k & 3 else "") + " sc1")
            if k == 3: A("s_add_u32 s35, s35, 4096")
        A("s_sub_u32 s35, s35, 4096")
        c(f"buffer_load_dwordx4 v[{SR}:{SR+3}], v5, {SW}, s78 offen sc1")
    def gtest():
        t = [GR + 2 * k + 1 for k in range(8)] + [SR + 1, SR + 3]
        A(f"v_xor_b32 v54, s34, v{t[0]}")
        for k in range(1, 10): A(f"v_xor_b32 v55, s34, v{t[k]}"); A("v_or_b32 v54, v54, v55")
        A("v_cmp_ne_u32 s[30:31], 0, v54")
        A("s_cmp_eq_u64 s[30:31], 0")
    def gissue():
        A("s_cmp_ge_u32 s7, 28"); A("s_cbranch_scc1 .L_gi")
        gloads(A)
        A(".L_gi:")
        vk.op(f"buffer_load_dword v19, v18, {SB}, 0 offen sc1", "poll")
    def gcheck():
        vk.wait("poll")
        A("s_cmp_ge_u32 s7, 28"); A("s_cbranch_scc1 .L_gdone")
        A(f"s_mov_b32 s28, {tmo}")
        A(".L_gt:")
        gtest()
        A("s_cbranch_scc1 .L_gok")
        A("s_sub_u32 s28, s28, 1")
        A("s_cbranch_scc1 .L_gok")
        A("s_sleep 2")
        gloads(A)
        A("s_waitcnt vmcnt(0)")
        A("s_branch .L_gt")
        A(".L_gok:")
        for st in (2, 4, 8):
            for k in range(0, 16, 2 * st): A(f"v_add_f32 v{GR+k}, v{GR+k}, v{GR+k+st}")
        A(f"v_mov_b32 v{SR+1}, v{SR+2}")
        A(f"v_cvt_pk_bf16_f32 v{GR+1}, v{GR}, v{GR}")
        A(f"v_and_b32 v{GR+1}, 0xffff0000, v{GR+1}")
        A(f"v_sub_f32 v{GR}, v{GR}, v{GR+1}")
        A(f"v_cvt_pk_bf16_f32 v{GR}, v{GR+1}, v{GR}")
        A(f"ds_write_b64 v6, v[{SR}:{SR+1}]")
        A(f"ds_write_b32 v7, v{GR}")
        A(".L_gdone:")
    def pcheck():
        A(f"s_mov_b32 s28, {tmo}")
        A(".L_pt:")
        A("v_cmp_eq_u32 s[30:31], 0, v19")
        A("s_cmp_eq_u64 s[30:31], 0")
        A("s_cbranch_scc1 .L_pok")
        A("s_sub_u32 s28, s28, 1")
        A("s_cbranch_scc1 .L_pok")
        A("s_sleep 2")
        A(f"buffer_load_dword v19, v18, {SB}, 0 offen sc1")
        A("s_waitcnt vmcnt(0)")
        A("s_branch .L_pt")
        A(".L_pok:")
        for q in range(4):
            A(f"s_add_u32 m0, s13, {KSZ+512+1024*q}")
            vk.op(f"buffer_load_dwordx4 v16, {SW}, s26 offen sc1 lds", "u")
            if q < 3: A("s_add_u32 s26, s26, 0x80000")
    WW[0] = opt.get("ww", 5)
    vk.wait(("par", 0))
    for x in k_dt(36) + kgen_y(37): A(x)
    work = kx + [("vmwait", ("par", 1))] + kgen_y(39) + k_rd(YF1, 52) + k_zero()
    budget = opt.get("budget", 50)
    PS = opt.get("pollslice", 11)
    stamp(A, opt, 8)
    for h in range(16):
        if opt.get("stamps") == 3 and h in (2, 4, 6, 8): stamp(A, opt, h - 1, 3); stamp(A, opt, h, 3)
        if opt.get("stamps") == 4 and h in (9, 11, 13, 15): stamp(A, opt, h - 8, 4); stamp(A, opt, h - 7, 4)
        bstamp(A, opt, h, 0)
        A("s_barrier")
        bstamp(A, opt, h, 1)
        if h == 0: stamp(A, opt, 2)
        b = budget; post = []
        if h < 2:
            R, M = cspart(h)
            for x in R: A(x)
            if h == 0:
                for x in k_rd(XF0, 54) + k_rd(XF1, 54, 8192): A(x)
            post = ["s_waitcnt lgkmcnt(0)"] + M
            b = 0
        if h == 2:
            post = mainonly(tagfix + ["s_and_b32 s15, s79, 7", "s_lshl_b32 s15, s15, 10", "s_add_u32 s15, s15, s35", "s_mov_b32 s30, -1", "s_mov_b32 s31, 0", "v_mov_b32 v55, s34",
                             "v_cndmask_b32 v54, v176, v160, s[30:31]", f"buffer_store_dwordx2 v[54:55], v4, {SW}, s15 offen sc1"])
            for x in post: A(x)
            post = []; b -= 10
            for x in k_rd(YF0, 52): A(x)
            b -= 16
        pfs = opt.get("pfs", [])
        if isinstance(pfs, int): pfs = [pfs] * 4
        if h in pfs:
            A("s_cmp_ge_u32 s7, 28"); A(f"s_cbranch_scc1 .L_pfx{h}")
            A("s_lshl_b32 s15, s7, 1"); A("s_bfe_u32 s30, s10, 0x10001"); A("s_add_u32 s15, s15, s30"); A("s_lshl_b32 s15, s15, 15")
            A("v_lshlrev_b32 v8, 7, v1")
            for q in range(4):
                if pfs[q] != h: continue
                A(f"s_add_u32 s30, s15, {8192*q}")
                A(f"buffer_load_dword v{41+q if q < 3 else 9}, v8, {SD}, s30 offen{opt.get('pfl', '')}")
            A(f".L_pfx{h}:")
            b -= 10
        if h == PS: assert not work
        if h == PS: gissue(); b -= 40
        if h == PS + 2: b -= 60
        while work and b > 0:
            it = work.pop(0); b -= weight(it)
            kx = opt.get("kx")
            if kx == "nowrite" and isinstance(it, str) and it.startswith("ds_write_b32"): continue
            if kx == "novalu" and isinstance(it, str) and it.startswith("v_") and not it.startswith("v_mfma"): continue
            if kx == "nocvt" and isinstance(it, str) and it.startswith("v_cvt_pk"): continue
            if kx == "nop" and isinstance(it, str) and it.startswith("v_") and not it.startswith("v_mfma"): it = "s_nop 0"
            emit(vk, it)
        for x in post: A(x)
        if h == PS + 2: gcheck(); pcheck()
        if h == 14: A("s_waitcnt lgkmcnt(0)")
    assert not work, f"kgen not finished {len(work)}"
    A("s_barrier")
    stamp(A, opt, 3)
    for x in k_mf(0) + k_mf(1): A(x)
    A("s_lshl_b32 s15, s10, 1")
    A(f"s_add_u32 s15, s15, {FL+38}")
    A("v_mov_b32 v16, s15")
    for x in k_tail(opt): A(x)
    A("s_waitcnt vmcnt(0) lgkmcnt(0)")
    A("ds_write_b32 v16, v16")
    A(".L_conv:")
    A(f"s_setprio {opt.get('prio', 0)}")
    if opt.get("xearly"):
        A(f"buffer_load_dwordx4 v[{XR}:{XR+3}], v{VO}, {SX}, s24 offen")
        A(f"buffer_load_dwordx4 v[{XR+4}:{XR+7}], v{VO}, {SX}, s24 offen offset:64")
    ZA = 64; FR = 128; U = 32
    def Freg(st, q): return FR + st * 64 + q * 4
    def Greg(st, d): return FR + st * 64 + 32 + d * 4
    def ldF(w, q):
        b = Freg(w & 1, q); pp = 4 * q + w
        return [f"ds_read_b64_tr_b16 v[{b}:{b+1}], v{VF} offset:{128*pp+32}", f"ds_read_b64_tr_b16 v[{b+2}:{b+3}], v{VF} offset:{128*pp}"]
    def ldG(w, d):
        b = Greg(w & 1, d)
        return [f"ds_read_b128 v[{b}:{b+3}], v{VG} offset:{512*d+128*(3-w)}"]
    A("s_waitcnt lgkmcnt(0)")
    A("s_cmp_eq_u32 s11, 0")
    A("s_cbranch_scc0 .L_t1")
    for ty in range(2):
        if ty: A(".L_t1:")
        tiles = [0, 3, 4, 7] if ty == 0 else [1, 2, 5, 6]
        nf = tiles[-1] + 1
        prs = [(q, at - q, ti) for ti, at in enumerate(tiles) for q in range(at + 1)]
        prs.sort(key=lambda x: (max(x[0], x[1]), x[2]))
        seq = []; rem = prs[:]
        while rem:
            k = 0
            if seq and rem[0][2] == seq[-1][2]:
                for kk in range(1, min(4, len(rem))):
                    if rem[kk][2] != seq[-1][2]: k = kk; break
            seq.append(rem.pop(k))
        def loads(w):
            L = []
            for i in range(nf): L.append((("F", i), ldF(w, i))); L.append((("G", i), ldG(w, i)))
            return L
        first = {}
        for w in range(4):
            if w == 0:
                L = loads(0); flat = []; pos = {}
                for key, ins in L:
                    flat += ins; pos[key] = len(flat)
                issued = 0
                def pump(upto):
                    nonlocal issued
                    while issued < min(upto, len(flat)): A(flat[issued]); issued += 1
                flat = flat + sum((ins for _, ins in loads(1)), [])
                pump(12)
            else:
                A("s_waitcnt lgkmcnt(0)")
                flat = sum((ins for _, ins in loads(w + 1)), []) if w < 3 else \
                    [f"ds_read_b32 v{U+4*p+b}, v{VX} offset:{2048*p+32*b}" for p in range(2) for b in range(4)]
                issued = 0
                if w == 3:
                    A("s_lshl_b32 s15, s10, 2")
                    A(f"s_add_u32 s15, s15, {FL}")
                    A("v_mov_b32 v16, s15")
                    A("v_mov_b32 v17, s34")
                if w == opt.get("wflagw", 2) and ty == 0:
                    A(f"v_mov_b32 v18, {FL}")
                    A("v_mov_b32 v19, 1")
                    A("s_waitcnt vmcnt(0)")
                    A("s_mov_b64 exec, 1")
                    A("ds_add_u32 v18, v19")
                    A("s_mov_b64 exec, -1")
            waited = 0
            for n, (q, d, ti) in enumerate(seq):
                if w == 0:
                    need_ = max(pos[("F", q)], pos[("G", d)])
                    if need_ > waited:
                        pump(need_)
                        A(f"s_waitcnt lgkmcnt({min(15, issued - need_)})"); waited = need_
                c = f"v[{ZA+16*ti}:{ZA+16*ti+15}]"
                a = Freg(w & 1, q); b = Greg(w & 1, d)
                A(f"v_mfma_f32_32x32x16_bf16 {c}, v[{a}:{a+3}], v[{b}:{b+3}], {c if ti in first else '0'}")
                first[ti] = 1
                pump(issued + (3 if w == 0 else 2))
            pump(len(flat))
        A("s_mov_b32 exec_lo, 0xfff0fff0")
        A("s_mov_b32 exec_hi, 0xfff0fff0")
        for ti in range(4):
            A(f"ds_write_b128 v{VH}, v[{ZA+16*ti+12}:{ZA+16*ti+15}] offset:{256*tiles[ti]+16}")
        A("s_mov_b64 exec, -1")
        A("v_add_u32 v16, 16, v16")
        A("v_xor_b32 v18, 4, v16")
        A("s_waitcnt lgkmcnt(0)")
        A("ds_write_b32 v16, v17")
        A(f"s_mov_b32 s28, {opt.get('tmo', 0x40000) * 8}")
        A(f".L_hw{ty}:")
        A("ds_read_b32 v19, v18")
        A("s_sub_u32 s28, s28, 1")
        A(f"s_cbranch_scc1 .L_hx{ty}")
        A("s_waitcnt lgkmcnt(0)")
        A("v_readfirstlane_b32 s15, v19")
        A("s_cmp_eq_u32 s15, 0")
        A(f"s_cbranch_scc1 .L_hw{ty}")
        A(f".L_hx{ty}:")
        HR = 128
        for ti in range(4):
            A(f"ds_read_b128 v[{HR+4*ti}:{HR+4*ti+3}], v{VH} offset:{256*tiles[ti]}")
        if ty == 0: A("s_branch .L_tdone")
    A(".L_tdone:")
    stamp(A, opt, 4)
    HR = 128; S = 144; O = 192
    def z(ti, i): return HR + 4 * ti + 4 + i if i < 0 else ZA + 16 * ti + i
    for ti in range(4):
        for i in range(9):
            A(f"v_add_f32_dpp v{S+12*ti+i}, v{z(ti,i+7)}, v{z(ti,i+5)} row_ror:8 row_mask:0xf bank_mask:0xc")
    for ti in range(4):
        for i in range(3, 9):
            A(f"v_add_f32_dpp v{S+12*ti+i}, v{z(ti,i-3)}, v{z(ti,i-1)} row_ror:8 row_mask:0xf bank_mask:0x3")
    A("s_waitcnt lgkmcnt(0)")
    for ti in range(4):
        for i in range(3):
            A(f"v_add_f32_dpp v{S+12*ti+i}, v{z(ti,i-3)}, v{z(ti,i-1)} row_ror:8 row_mask:0xf bank_mask:0x3")
    A("s_lshl_b32 s14, s17, 16")
    A("s_and_b32 s15, s17, 0xffff0000")
    A("s_bitcmp0_b32 s12, 0")
    A("s_cselect_b32 s14, s14, s15")
    A("s_lshl_b32 s12, s12, 12")
    A(f"s_add_u32 s12, s12, {YT_OFF}")
    for p in range(2):
        a_, b_ = S + 12 * (2 * p), S + 12 * (2 * p + 1)
        for k in range(8):
            A(f"v_add_f32_dpp v{O+8*p+k}, v{a_+k}, v{a_+k+1} row_shl:4 row_mask:0xf bank_mask:0x5")
        for k in range(8):
            A(f"v_add_f32_dpp v{O+8*p+k}, v{b_+k+1}, v{b_+k} row_shr:4 row_mask:0xf bank_mask:0xa")
    T = 64
    for p in range(2):
        for b in range(4):
            A(f"v_lshlrev_b32 v{T+8*p+b}, 16, v{U+4*p+b}")
            A(f"v_and_b32 v{T+8*p+b+4}, 0xffff0000, v{U+4*p+b}")
        for k in range(8): A(f"v_fmac_f32 v{O+8*p+k}, s14, v{T+8*p+k}")
        for k in range(4): A(f"v_cvt_pk_bf16_f32 v{80+4*p+k}, v{O+8*p+2*k}, v{O+8*p+2*k+1}")
        A(f"buffer_store_dwordx4 v[{80+4*p}:{83+4*p}], v{VY}, {SW}, s12 offen offset:{2048*p} sc1")
    if opt.get("ywait") == 2:
        A(f"v_mov_b32 v11, {FL+48}")
        A("v_mov_b32 v12, 1")
        A("s_mov_b64 exec, 1")
        A("ds_add_u32 v11, v12")
        A("s_mov_b64 exec, -1")
    A("v_and_b32 v8, 31, v1")
    A("v_lshlrev_b32 v8, 2, v8")
    A("s_lshl_b32 s14, s9, 7")
    A(f"s_add_u32 s14, s14, {FY_OFF}")
    A("v_lshrrev_b32 v9, 1, v1")
    A("v_lshlrev_b32 v9, 12, v9")
    A("v_and_b32 v10, 1, v1")
    A("v_lshl_add_u32 v9, v10, 4, v9")
    A(f"v_add_u32 v10, {32*4096}, v9")
    A("s_lshl_b32 s15, s9, 18")
    A("s_lshl_b32 s26, s8, 7")
    A("s_add_u32 s15, s15, s26")
    A("s_lshl_b32 s26, s10, 5")
    A("s_add_u32 s15, s15, s26")
    A(f"s_add_u32 s15, s15, {YT_OFF}")
    A(f"v_mov_b32 v11, {FL+36}")
    A("v_mov_b32 v12, 1")
    A("s_waitcnt vmcnt(0)")
    stamp(A, opt, 5)
    A("s_mov_b64 exec, 1")
    A("ds_add_rtn_u32 v13, v11, v12")
    A("s_waitcnt lgkmcnt(0)")
    A("v_readfirstlane_b32 s26, v13")
    A("s_cmp_lg_u32 s26, 3")
    A("s_cbranch_scc1 .L_nosig")
    A("s_lshl_b32 s26, s2, 2")
    A(f"s_add_u32 s26, s26, {FY_OFF}")
    A("v_mov_b32 v13, 0")
    A(f"buffer_store_dword v17, v13, {SW}, s26 offen sc1")
    A(".L_nosig:")
    A("s_mov_b64 exec, -1")
    if not opt.get("xearly"):
        A(f"buffer_load_dwordx4 v[{XR}:{XR+3}], v{VO}, {SX}, s24 offen")
        A(f"buffer_load_dwordx4 v[{XR+4}:{XR+7}], v{VO}, {SX}, s24 offen offset:64")
    if "ytrig" in opt:
        A(f"s_mov_b32 s28, {opt.get('tmo', 0x40000) * 8}")
        A(".L_yd:")
        A("ds_read_b32 v13, v11 offset:16")
        A("s_sub_u32 s28, s28, 1")
        A("s_cbranch_scc1 .L_ydx")
        A("s_waitcnt lgkmcnt(0)")
        A("v_readfirstlane_b32 s26, v13")
        A("s_cmp_eq_u32 s26, 4")
        A("s_cbranch_scc1 .L_ydx")
        A("s_sleep 2")
        A("s_branch .L_yd")
        A(".L_ydx:")
    A(f"s_mov_b32 s28, {opt.get('tmo', 0x40000)}")
    A(".L_poll:")
    A(f"buffer_load_dword v13, v8, {SW}, s14 offen sc1")
    A("s_sub_u32 s28, s28, 1")
    A("s_cbranch_scc1 .L_got")
    A("s_waitcnt vmcnt(0)")
    A("v_cmp_ne_u32 vcc, s34, v13")
    A("s_cbranch_vccz .L_got")
    A(f"s_sleep {opt.get('psleep', 4)}")
    A("s_branch .L_poll")
    A(".L_got:")
    A(f"buffer_load_dwordx4 v[64:67], v9, {SW}, s15 offen sc1")
    A(f"buffer_load_dwordx4 v[68:71], v10, {SW}, s15 offen sc1")
    stamp(A, opt, 6)
    A("s_lshl_b32 s26, s11, 11")
    A("s_add_u32 s26, s26, s13")
    A("v_lshl_add_u32 v11, v1, 4, s26")
    A("v_lshrrev_b32 v12, 4, v1")
    A("v_lshlrev_b32 v12, 8, v12")
    A("v_and_b32 v13, 15, v1")
    A("v_lshl_add_u32 v12, v13, 3, v12")
    A("v_add_u32 v12, s26, v12")
    A("v_lshrrev_b32 v14, 4, v1")
    A("v_lshlrev_b32 v14, 11, v14")
    A("v_lshl_add_u32 v14, v13, 4, v14")
    A("s_lshl_b32 s27, s10, 8")
    A("v_add_u32 v14, s27, v14")
    R = 96
    for q in range(8):
        A(f"v_lshlrev_b32 v{R+2*q}, 16, v{XR+q}")
        A(f"v_and_b32 v{R+2*q+1}, 0xffff0000, v{XR+q}")
    A("s_waitcnt vmcnt(0)")
    A("ds_write_b128 v11, v[64:67]")
    A("ds_write_b128 v11, v[68:71] offset:1024")
    A("s_waitcnt lgkmcnt(0)")
    for hf in range(2):
        for n in range(2):
            A(f"ds_read_b64_tr_b16 v[{72+4*hf+2*n}:{73+4*hf+2*n}], v12 offset:{hf*1024+n*128}")
    A("s_waitcnt lgkmcnt(0)")
    for q in range(8):
        A(f"v_lshlrev_b32 v{80+2*(q&3)}, 16, v{72+q}")
        A(f"v_and_b32 v{81+2*(q&3)}, 0xffff0000, v{72+q}")
        A(f"v_add_f32 v{R+2*q}, v{R+2*q}, v{80+2*(q&3)}")
        A(f"v_add_f32 v{R+2*q+1}, v{R+2*q+1}, v{81+2*(q&3)}")
        A(f"v_cvt_pk_bf16_f32 v{R+2*q+1}, v{R+2*q}, v{R+2*q+1}")
    for q in range(8):
        A(f"v_lshlrev_b32 v{R+2*q}, 16, v{R+2*q+1}")
        A(f"v_and_b32 v{R+2*q+1}, 0xffff0000, v{R+2*q+1}")
    stamp(A, opt, 7)
    A("s_barrier")
    A("s_lshl_b32 s15, s2, 2")
    A("s_add_u32 s15, s15, s10")
    A("s_cmp_lg_u32 s15, 0")
    A("s_cbranch_scc1 .L_noep")
    A(f"v_mov_b32 v13, {EP_OFF}")
    A("s_mov_b64 exec, 1")
    A(f"buffer_store_dword v17, v13, {SW}, 0 offen sc1")
    A("s_mov_b64 exec, -1")
    A(".L_noep:")
    P = 128
    for hf in range(2):
        for j in range(2):
            for q in range(4):
                b = P + (hf * 2 + j) * 16 + q * 4
                A(f"ds_read_b128 v[{b}:{b+3}], v14 offset:{q*8192 + hf*32768 + j*1024}")
    for hf in range(2):
        for j in range(2):
            n = hf * 2 + j; b = P + n * 16
            A(f"s_waitcnt lgkmcnt({12-4*n})")
            for e in range(0, 4, 2):
                A(f"v_pk_add_f32 v[{b+e}:{b+e+1}], v[{b+e}:{b+e+1}], v[{b+4+e}:{b+5+e}]")
                A(f"v_pk_add_f32 v[{b+8+e}:{b+9+e}], v[{b+8+e}:{b+9+e}], v[{b+12+e}:{b+13+e}]")
            for e in range(0, 4, 2):
                A(f"v_pk_add_f32 v[{b+e}:{b+e+1}], v[{b+e}:{b+e+1}], v[{b+8+e}:{b+9+e}]")
            for e in range(0, 4, 2):
                A(f"v_cvt_pk_bf16_f32 v{b+e+1}, v{b+e}, v{b+e+1}")
            for e in range(0, 4, 2):
                A(f"v_lshlrev_b32 v{b+e}, 16, v{b+e+1}")
                A(f"v_and_b32 v{b+e+1}, 0xffff0000, v{b+e+1}")
            for e in range(0, 4, 2):
                r = R + 4 * n + e
                A(f"v_pk_add_f32 v[{b+e}:{b+e+1}], v[{b+e}:{b+e+1}], v[{r}:{r+1}]")
            for e in range(0, 4, 2):
                A(f"v_cvt_pk_bf16_f32 v{64+2*n+e//2}, v{b+e}, v{b+e+1}")
        A(f"buffer_store_dwordx4 v[{64+4*hf}:{67+4*hf}], v{VO}, {SO}, s24 offen offset:{64*hf}")
    A("s_branch .L_fin")
    A(".L_w03:")
    if opt.get("gprio", 1): A(f"s_setprio {opt.get('gprio', 1)}")
    ACC = 128; WF = 64; XF = 96; CSA = 16; CSB = 32
    XP = 96
    A("s_lshl_b32 s10, s2, 2")
    A("s_add_u32 s10, s10, s3")
    A("s_and_b32 s11, s10, -2")
    A("v_mov_b32 v105, s11")
    A("s_lshl_b32 s10, s10, 7")
    A("v_lshl_add_u32 v104, v1, 1, s10")
    for r in range(XP, XP + 7): A(f"v_mov_b32 v{r}, 0")
    A(f"s_mov_b32 s15, {EP_OFF}")
    A("s_cmp_ge_u32 s7, 28")
    A("s_waitcnt lgkmcnt(0)")
    A(f"global_load_short_d16_hi v{XP+6}, v105, s[30:31]")
    for k in range(6): A(f"global_load_short_d16_hi v{XP+k}, v104, s[{18+2*k}:{19+2*k}]")
    A("s_cbranch_scc1 .L_xtag")
    A("s_load_dword s34, s[46:47], s15")
    A(".L_xtag:")
    A("s_lshl_b32 s10, s3, 13")
    A("s_add_u32 s10, s10, 65536")
    for x in tab_waddr(112, "s10"): A(x)
    A("v_and_b32 v60, 31, v1")
    A("v_lshrrev_b32 v61, 5, v1")
    A("v_bfe_u32 v62, v1, 1, 3")
    A("v_xor_b32 v62, v62, v61")
    A("v_lshlrev_b32 v62, 4, v62")
    A("v_lshl_add_u32 v62, v60, 7, v62")
    A("s_lshl_b32 s10, s3, 13")
    A("v_add_u32 v2, s10, v62")
    for kp in range(1, 4): A(f"v_xor_b32 v{2+kp}, {kp*32}, v2")
    for kp in range(4): A(f"v_add_u32 v{6+kp}, 0x10000, v{2+kp}")
    A("v_bfe_u32 v62, v1, 4, 1")
    A("v_lshlrev_b32 v10, 11, v62")
    A("v_lshl_add_u32 v10, v61, 10, v10")
    A("v_bfe_u32 v63, v1, 2, 2")
    A("v_lshl_add_u32 v10, v63, 7, v10")
    A("v_and_b32 v63, 3, v1")
    A("v_lshl_add_u32 v10, v63, 3, v10")
    A("v_bfe_u32 v63, v1, 3, 2")
    A("v_lshl_add_u32 v10, v63, 5, v10")
    A(f"v_add_u32 v10, {WR}, v10")
    for tp in range(1, 4): A(f"v_xor_b32 v{10+tp}, {tp*32}, v10")
    for r in range(CSA, CSB + 8): A(f"v_mov_b32 v{r}, 0")
    A("s_lshl_b32 s11, s3, 8")
    A(f"s_add_u32 s11, s11, {STL}")
    A("v_lshl_add_u32 v48, v60, 2, s11")
    A(f"v_lshlrev_b32 v49, 2, v60")
    A(f"v_add_u32 v49, {CSL}, v49")
    A(f"v_mov_b32 v50, {FL+32}")
    A("s_mov_b32 vcc_lo, -1"); A("s_mov_b32 vcc_hi, 0")
    A("s_lshl_b32 s12, s4, 2")
    A("s_add_u32 s12, s12, s3")
    A("s_mul_i32 s12, s12, 224")
    A("s_mul_i32 s13, s5, 7")
    A("s_add_u32 s13, s13, s9")
    A("s_lshl_b32 s13, s13, 2")
    A("s_add_u32 s12, s12, s13")
    A("s_lshl_b32 s12, s12, 10")
    A(f"s_add_u32 s13, s12, {112*1024}")
    A("v_lshlrev_b32 v51, 4, v1")
    for x in srds(): A(x)
    stamp(A, opt, 1, 2)
    A("s_waitcnt vmcnt(0)")
    stamp(A, opt, 2, 2)
    for x in kgen_x(XP, 112): A(x)
    A("s_cmp_ge_u32 s7, 28")
    A("s_waitcnt lgkmcnt(0)")
    A("s_cbranch_scc1 .L_auxbar")
    lg = Cnt(A, "lgkmcnt", 15)
    def reads(s):
        i, kp, h = s >> 2, s & 3, s >> 1
        xb = XF + 8 * (s & 1); wb = WF + 16 * (s & 1)
        xa = (6 if i % 3 == 2 else 2) + kp; xo = 32768 if i % 3 == 1 else 0
        X = lambda tb: (f"ds_read_b128 v[{xb+4*tb}:{xb+4*tb+3}], v{xa} offset:{xo+tb*4096}", ("x", s, tb))
        o = (h & 3) * 8192 + (s & 1) * 4096
        W = lambda tp: [(f"ds_read_b64_tr_b16 v[{wb+4*tp}:{wb+4*tp+1}], v{10+tp} offset:{o}", ("w", s, tp)),
                        (f"ds_read_b64_tr_b16 v[{wb+4*tp+2}:{wb+4*tp+3}], v{10+tp} offset:{o+512}", ("w", s, tp))]
        return [X(0)] + W(0) + [X(1)] + W(1) + W(2) + W(3)
    stamp(A, opt, 1)
    A("s_barrier")
    stamp(A, opt, 2)
    for t, g in reads(0): lg.op(t, g)
    c1 = -2 * 0.7978845608028654 * LOG2E
    KC = 40
    for s in range(32):
        R = reads(s + 1) if s < 31 else []
        extra = []
        if s == 29:
            R += [(f"ds_read_b32 v{52+tb}, v48 offset:{tb*128}", "st") for tb in range(2)]
        if s == 30:
            R += [(f"ds_read_b32 v{CSA+4*tp}, v49 offset:{tp*128}", "cs") for tp in range(4)]
        if s == 31:
            for tb in range(2):
                k = KC + 4 * tb; d = 52 + tb
                extra += [f"v_and_b32 v{k+2}, 0xffff0000, v{d}", f"v_and_b32 v{d}, 0xffff, v{d}", f"v_rcp_f32 v{k+1}, v{k+2}", f"v_lshl_or_b32 v{d}, v{d}, 16, v{d}",
                          f"v_mul_f32 v{k+2}, v{k+2}, v{k+2}", f"v_cndmask_b32 v{CSB+4*tb}, 0, v{d}, vcc", f"v_mul_f32 v{k}, {fhex(c1)}, v{k+1}", f"v_mul_f32 v{k+1}, v{k+1}, v{k+1}",
                          f"v_mul_f32 v{k+1}, {fhex(0.044715)}, v{k+1}", f"v_mul_f32 v{k+1}, v{k}, v{k+1}"]
        bar = s & 1
        for n in range(8):
            tp, tb = n >> 1, n & 1
            lg.wait(("x", s, tb), ("w", s, tp))
            c = f"v[{ACC+64*tb+16*tp}:{ACC+64*tb+16*tp+15}]"
            a = WF + 16 * (s & 1) + 4 * tp; b = XF + 8 * (s & 1) + 4 * tb
            A(f"v_mfma_f32_32x32x16_bf16 {c}, v[{a}:{a+3}], v[{b}:{b+3}], {'0' if s == 0 else c}")
            if bar and n == 0:
                hb = (s + 1) >> 1
                lg.all()
                if opt.get("stamps") == 3 and hb in (2, 4, 6, 8): stamp(A, opt, hb - 1, 3)
                if opt.get("stamps") == 4 and hb in (9, 11, 13, 15): stamp(A, opt, hb - 8, 4)
                bstamp(A, opt, hb, 0)
                A("s_barrier")
                bstamp(A, opt, hb, 1)
                if opt.get("stamps") == 3 and hb in (2, 4, 6, 8): stamp(A, opt, hb, 3)
                if opt.get("stamps") == 4 and hb in (9, 11, 13, 15): stamp(A, opt, hb - 7, 4)
                if s == 15: stamp(A, opt, 3)
            for _ in range(2 if len(R) <= 2 * (7 - n) else 3):
                if R: lg.op(*R.pop(0))
            for _ in range(3):
                if extra: A(extra.pop(0))
    assert not R and not extra
    for n in range(8):
        tb, tp = n >> 2, n & 3
        c = f"v[{ACC+64*tb+16*tp}:{ACC+64*tb+16*tp+15}]"
        A(f"v_mfma_f32_32x32x16_bf16 {c}, v[{CSA+4*tp}:{CSA+4*tp+3}], v[{CSB+4*tb}:{CSB+4*tb+3}], {c}")
    stamp(A, opt, 4)
    if "eprio" in opt: A(f"s_setprio {opt['eprio']}")
    for n in range(8):
        tb, tp = n >> 2, n & 3
        g = lambda e: ACC + 64 * tb + 16 * tp + e
        u = lambda e: g(e) + 8
        T = 64 + (n & 1) * 16; k = KC + 4 * tb
        if opt.get("pk"):
            pr = lambda r: f"v[{r}:{r+1}]"
            for e in range(0, 8, 2): A(f"v_pk_mul_f32 {pr(T+e)}, {pr(g(e))}, {pr(g(e))}")
            for e in range(0, 8, 2): A(f"v_pk_fma_f32 {pr(T+e)}, {pr(T+e)}, {pr(k)}, {pr(k)} op_sel:[0,1,0] op_sel_hi:[1,1,0]")
            for e in range(0, 8, 2): A(f"v_pk_mul_f32 {pr(T+e)}, {pr(T+e)}, {pr(g(e))}")
            for e in range(0, 8, 2):
                A(f"v_exp_f32 v{T+e}, v{T+e}"); A(f"v_exp_f32 v{T+e+1}, v{T+e+1}")
                A(f"v_pk_mul_f32 {pr(g(e))}, {pr(g(e))}, {pr(u(e))}")
            for e in range(0, 8, 2): A(f"v_pk_fma_f32 {pr(T+e)}, {pr(T+e)}, {pr(k+2)}, {pr(k+2)} op_sel:[0,0,0] op_sel_hi:[1,0,0]")
            for e in range(8): A(f"v_rcp_f32 v{T+e}, v{T+e}")
            for e in range(0, 8, 2): A(f"v_pk_mul_f32 {pr(g(e))}, {pr(g(e))}, {pr(T+e)}")
        else:
            for e in range(8): A(f"v_mul_f32 v{T+e}, v{g(e)}, v{g(e)}")
            for e in range(8): A(f"v_fma_f32 v{T+e}, v{T+e}, v{k+1}, v{k}")
            for e in range(8): A(f"v_mul_f32 v{T+e}, v{T+e}, v{g(e)}")
            for e in range(8):
                A(f"v_exp_f32 v{T+e}, v{T+e}")
                A(f"v_mul_f32 v{g(e)}, v{g(e)}, v{u(e)}")
            for e in range(8): A(f"v_fma_f32 v{T+e}, v{T+e}, v{k+2}, v{k+2}")
            for e in range(8): A(f"v_rcp_f32 v{T+e}, v{T+e}")
            for e in range(8): A(f"v_mul_f32 v{g(e)}, v{g(e)}, v{T+e}")
        for q in range(4): A(f"v_cvt_pk_bf16_f32 v{T+8+q}, v{g(2*q)}, v{g(2*q+1)}")
        A(f"buffer_store_dwordx4 v[{T+8}:{T+11}], v51, {SW}, s{12+tb} offen offset:{tp*1024} sc1")
    A("v_mov_b32 v52, 1")
    for x in tagfix: A(x)
    A("v_mov_b32 v54, s34")
    A("s_lshl_b32 s12, s4, 2")
    A("s_add_u32 s12, s12, s5")
    A("s_lshl_b32 s12, s12, 5")
    A("s_add_u32 s12, s12, s9")
    A("s_lshl_b32 s12, s12, 2")
    A(f"s_add_u32 s12, s12, {FH_OFF}")
    stamp(A, opt, 5)
    A("s_waitcnt vmcnt(0)")
    A("s_mov_b64 exec, 1")
    A("ds_add_rtn_u32 v53, v50, v52")
    A("s_waitcnt lgkmcnt(0)")
    A("v_readfirstlane_b32 s13, v53")
    A("s_cmp_lg_u32 s13, 3")
    A("s_cbranch_scc1 .L_nohs")
    A("v_mov_b32 v53, 0")
    A(f"buffer_store_dword v54, v53, {SW}, s12 offen sc1")
    A(".L_nohs:")
    A("s_mov_b64 exec, -1")
    A(".L_g2:")
    ACC = 64; HF = 128; WF = 32; DH = opt.get("DH", 16)
    hld = opt.get("hld", " sc1")
    A(f"v_mov_b32 v16, {FL}")
    A("v_lshlrev_b32 v2, 4, v1")
    A(f"v_add_u32 v3, {112*1024}, v2")
    A("v_lshrrev_b32 v8, 3, v1")
    A("v_and_b32 v9, 7, v1")
    A("v_bfe_u32 v10, v1, 4, 1")
    A("v_lshlrev_b32 v10, 2, v10")
    A("v_xor_b32 v9, v9, v10")
    A("v_lshlrev_b32 v9, 4, v9")
    A("v_lshl_add_u32 v4, v8, 10, v9")
    A("v_add_u32 v5, 7168, v4")
    A("s_mul_i32 s11, s3, 28")
    A("s_mul_i32 s12, s8, 224")
    A("s_add_u32 s12, s12, s11")
    A("s_lshl_b32 s12, s12, 10")
    A("v_add_u32 v2, s12, v2")
    A("v_add_u32 v3, s12, v3")
    A("s_lshl_b32 s13, s11, 14")
    A("s_lshl_b32 s14, s9, 7")
    A("s_add_u32 s13, s13, s14")
    A("v_add_u32 v4, s13, v4")
    A("v_add_u32 v5, s13, v5")
    for x in rot_phase("s12", 10): A(x)
    A("s_lshl_b32 s13, s12, 4")
    A("s_lshl_b32 s15, s3, 13")
    A("v_lshrrev_b32 v8, 5, v1")
    A("v_bfe_u32 v9, v1, 2, 2")
    A("v_lshl_add_u32 v8, v8, 2, v9")
    A("v_lshlrev_b32 v8, 7, v8")
    A("v_bfe_u32 v9, v1, 4, 1")
    A("v_lshl_add_u32 v8, v9, 5, v8")
    A("v_and_b32 v9, 3, v1")
    A("v_lshl_add_u32 v8, v9, 3, v8")
    A("v_bfe_u32 v9, v1, 3, 1")
    A("v_lshl_add_u32 v8, v9, 6, v8")
    A("v_add_u32 v6, s15, v8")
    A("v_xor_b32 v7, 64, v6")
    A("v_add_u32 v8, 0x10000, v6")
    A("v_add_u32 v9, 0x10000, v7")
    A("v_min_u32 v10, 6, v1")
    A("v_lshlrev_b32 v10, 2, v10")
    A("s_lshr_b32 s14, s8, 2")
    A("s_lshl_b32 s14, s14, 2")
    A("s_add_u32 s14, s14, s3")
    A("s_lshl_b32 s14, s14, 7")
    A(f"s_add_u32 s14, s14, {FH_OFF}")
    A(f"s_mov_b32 s28, {opt.get('tmo', 0x40000) * 8}")
    A(".L_wf:")
    A("ds_read_b32 v17, v16")
    A("s_sub_u32 s28, s28, 1")
    A("s_cbranch_scc1 .L_wfx")
    A("s_waitcnt lgkmcnt(0)")
    A("v_readfirstlane_b32 s29, v17")
    A("s_cmp_eq_u32 s29, 2")
    A("s_cbranch_scc1 .L_wfx")
    A("s_sleep 1")
    A("s_branch .L_wf")
    A(".L_wfx:")
    stamp(A, opt, 6)
    def trW(s):
        b = WF + (s & 1) * 8
        o = RREG[(s & 15) >> 2] + (s & 3) * 2048
        base = 8 if o >= 65536 else 6; o &= 65535
        for cb in range(2):
            A(f"ds_read_b64_tr_b16 v[{b+4*cb}:{b+4*cb+1}], v{base+cb} offset:{o}")
            A(f"ds_read_b64_tr_b16 v[{b+4*cb+2}:{b+4*cb+3}], v{base+cb} offset:{o+1024}")
    trW(0)
    A(f"s_mov_b32 s28, {opt.get('tmo', 0x40000)}")
    A(".L_hp:")
    A(f"buffer_load_dword v17, v10, {SW}, s14 offen sc1")
    A("s_sub_u32 s28, s28, 1")
    A("s_cbranch_scc1 .L_hpx")
    A("s_waitcnt vmcnt(0)")
    A("v_cmp_ne_u32 vcc, s34, v17")
    A("s_cbranch_vccz .L_hpx")
    A(f"s_sleep {opt.get('hsleep', 1)}")
    A("s_branch .L_hp")
    A(".L_hpx:")
    if opt.get("ywait"):
        A(f"s_mov_b32 s28, {opt.get('tmo', 0x40000) * 8}")
        A(".L_yw:")
        A(f"ds_read_b32 v17, v16 offset:{36 if opt['ywait'] == 1 else 48}")
        A("s_sub_u32 s28, s28, 1")
        A("s_cbranch_scc1 .L_ywx")
        A("s_waitcnt lgkmcnt(0)")
        A("v_readfirstlane_b32 s29, v17")
        A("s_cmp_eq_u32 s29, 4")
        A("s_cbranch_scc1 .L_ywx")
        A("s_sleep 1")
        A("s_branch .L_yw")
        A(".L_ywx:")
    stamp(A, opt, 7)
    v2 = Cnt(A, "vmcnt", 63)
    def ldH(s, th):
        if th == 0:
            for x in rot_off("s16", "s17", "s12", s, 10, wrot): A(x)
        b = HF + (s % DH) * 8 + th * 4
        v2.op(f"buffer_load_dwordx4 v[{b}:{b+3}], v{2+th}, {SW}, s16 offen{hld}", ("h", s, th))
    def dmaW(s, part):
        if part == 0:
            A(f"s_add_u32 m0, s15, {RREG[(s & 15) >> 2] + (s & 3) * 2048}")
            for x in rot_off("s18", "s19", "s13", s, 14, wrot): A(x)
            v2.op(f"buffer_load_dwordx4 v4, {SD}, s18 offen lds{wld}", ("d", s))
        else:
            v2.op(f"buffer_load_dwordx4 v5, {SD}, s18 offen offset:1024 lds{wld}", ("d", s))
    for s in range(DH): ldH(s, 0); ldH(s, 1)
    NS = 28
    for s in range(NS):
        if s + 1 < NS:
            if s + 1 >= 16: v2.wait(("d", s + 1))
            trW(s + 1)
            A("s_waitcnt lgkmcnt(4)")
        else:
            A("s_waitcnt lgkmcnt(0)")
        nx = s + DH < NS; nw = s + 16 < NS
        def M(cb, th):
            c = f"v[{ACC+16*(2*th+cb)}:{ACC+16*(2*th+cb)+15}]"
            a = WF + (s & 1) * 8 + 4 * cb; b = HF + (s % DH) * 8 + th * 4
            A(f"v_mfma_f32_32x32x16_bf16 {c}, v[{a}:{a+3}], v[{b}:{b+3}], {'0' if s == 0 else c}")
        if nw: dmaW(s + 16, 0); dmaW(s + 16, 1)
        v2.wait(("h", s, 0))
        if s == 0: stamp(A, opt, 8)
        M(0, 0)
        M(1, 0)
        if nx: ldH(s + DH, 0)
        v2.wait(("h", s, 1))
        M(0, 1)
        M(1, 1)
        if nx: ldH(s + DH, 1)
        if s == opt.get("ytrig"):
            A("v_mov_b32 v17, 1")
            A("s_mov_b64 exec, 1")
            A("ds_add_u32 v16, v17 offset:52")
            A("s_mov_b64 exec, -1")
    stamp(A, opt, 9)
    A("v_lshrrev_b32 v8, 5, v1")
    A("v_lshlrev_b32 v8, 10, v8")
    A("v_and_b32 v9, 31, v1")
    A("v_lshl_add_u32 v8, v9, 4, v8")
    A("v_add_u32 v8, s15, v8")
    for th in range(2):
        for cb in range(2):
            for rq in range(4):
                b = ACC + 16 * (2 * th + cb) + 4 * rq
                A(f"ds_write_b128 v8, v[{b}:{b+3}] offset:{cb*32768 + 2*rq*1024 + th*512}")
    A("s_waitcnt lgkmcnt(0)")
    A("s_barrier")
    A(".L_fin:")
    if opt.get("stamps"):
        A("s_waitcnt vmcnt(0)")
        A("s_memtime s[100:101]")
        A("s_memrealtime s[78:79]")
        A("s_waitcnt lgkmcnt(0)")
        for q in range(1, 11): A(f"s_sub_u32 s{80+2*q}, s{80+2*q}, s80")
        A("v_mov_b32 v64, s76"); A("v_mov_b32 v65, s78")
        for q in range(1, 11): A(f"v_mov_b32 v{65+q}, s{80+2*q}")
        A("s_lshl_b32 s14, s2, 3"); A("s_add_u32 s14, s14, s3"); A("s_lshl_b32 s14, s14, 6")
        A(f"s_add_u32 s14, s14, {STAMP_OFF}")
        A("v_mov_b32 v62, 0")
        A("s_mov_b64 exec, 1")
        for q in range(3): A(f"buffer_store_dwordx4 v[{64+4*q}:{67+4*q}], v62, {SW}, s14 offen offset:{16*q}")
    A(".L_end:")
    A("s_endpgm")
    return A.L

P = "parallel_sum__ssm_conv_s4__geglu_ffn__prompt"
def build(opt, fn):
    l, n = fix_hazards(gen_kf(opt), opt.get("verbose"))
    hdr = open("cdna_kernels/" + P + ".s.ref").read().split("; Override launch")[0]
    s = hdr + f"; @launch grid=(256,1,1) block=(512,1,1) lds={LDS_F}\n"
    s += '.amdgcn_target "amdgcn-amd-amdhsa--gfx950"\n'
    s += kernel_text(P + "_kernel", ["KSTART:"] + l, 256, 256)
    s += "CODE_END:\n    s_endpgm\n"
    s += kernel_desc(P + "_kernel", 256, 256)
    open(fn, "w").write(s)
    return n
if __name__ == "__main__":
    import sys, json
    opt = json.loads(sys.argv[2]) if len(sys.argv) > 2 else {}
    print("nops", build(opt, sys.argv[1]))
```

```python
import math
from fw import *

H_OFF = 0x0
XND_OFF = 0x800000
ST_OFF = 0xA00000
CS_OFF = 0xA10000
YT_OFF = 0xC00000
FH_OFF = 0xEC0000
FY_OFF = 0xED0000
EP_OFF = 0xEE0000
STAMP_OFF = 0xF00000
KD_OFF = 0x1000000
WS_SIZE = 0x1200000

LOG2E = 1.4426950408889634
def split_hi(c, bits):
    m, e = math.frexp(c); hi = math.ldexp(round(m * (1 << bits)), e - bits); return hi, c - hi

WR = 98304
CB = 131072; CH = 16384
KSZ, USZ, HSZ = 4160, 4608, 3 * 129 * 16
STL = CB + 14976
FL = CB + 16128
TB = 6656
CSL = CB + CH + 14976
RREG = [65536, 0, 98304, 32768]
LDS_F = 163840
SX, SG, SU, SD, SO, SW, SB = "s[48:51]", "s[52:55]", "s[56:59]", "s[60:63]", "s[64:67]", "s[68:71]", "s[72:75]"

class Cnt:
    def __init__(s, A, name, mx): s.A = A; s.q = []; s.done = -1; s.name = name; s.mx = mx
    def op(s, text, tag=None): s.A(text); s.q.append(tag)
    def wait(s, *tags):
        idx = max(i for i, t in enumerate(s.q) if t in tags)
        if idx > s.done:
            n = len(s.q) - 1 - idx
            s.A(f"s_waitcnt {s.name}({min(n, s.mx)})")
            s.done = idx if n <= s.mx else len(s.q) - 1 - s.mx
    def all(s):
        s.A(f"s_waitcnt {s.name}(0)"); s.done = len(s.q) - 1

def stamp(A, opt, idx, st=1):
    if opt.get("stamps") and (idx == 0 or opt.get("stamps") == st): A(f"s_memtime s[{80+2*idx}:{81+2*idx}]")

def bstamp(A, opt, h, after):
    h0 = opt.get("sb", 8)
    if opt.get("stamps") == 5 and h0 <= h < h0 + 5:
        idx = 2 * (h - h0) + after
        if 1 <= idx <= 9: A(f"s_memtime s[{80+2*idx}:{81+2*idx}]")

def cmul(L, d, x, e):
    L.append(f"v_mul_f32 v{d}, v{x}, v{e}")
    L.append(f"v_mul_f32 v{d+1}, v{x}, v{e+1}")
    L.append(f"v_fma_f32 v{d}, -v{x+1}, v{e+1}, v{d}")
    L.append(f"v_fmac_f32 v{d+1}, v{x+1}, v{e}")

def tab_waddr(base, sreg):
    L = ["v_and_b32 v60, 7, v1", "v_lshlrev_b32 v60, 4, v60", "v_lshl_add_u32 v60, v1, 7, v60", f"v_add_u32 v{base}, {sreg}, v60"]
    for j in range(1, 8): L.append(f"v_xor_b32 v{base+j}, {j<<4}, v{base}")
    return L
def kgen_addr():
    L = tab_waddr(44, "s14")
    L.append("v_lshrrev_b32 v60, 5, v1")
    L.append("v_bfe_u32 v61, v1, 3, 1")
    L.append("v_lshl_add_u32 v60, v60, 2, v61")
    L.append("v_bfe_u32 v61, v1, 2, 1")
    L.append("v_bfe_u32 v62, v1, 4, 1")
    L.append("v_lshl_add_u32 v61, v61, 1, v62")
    L.append("v_bfe_u32 v62, v1, 1, 1")
    L.append("v_lshl_add_u32 v61, v61, 1, v62")
    L.append("v_xor_b32 v61, v61, v60")
    L.append("v_lshlrev_b32 v61, 4, v61")
    L.append("v_lshl_add_u32 v61, v60, 7, v61")
    L.append("v_and_b32 v62, 1, v1")
    L.append("v_lshl_add_u32 v61, v62, 3, v61")
    L.append("v_add_u32 v52, s14, v61")
    L.append("v_xor_b32 v53, 32, v52")
    L.append("v_add_u32 v54, s15, v61")
    L.append("v_xor_b32 v55, 32, v54")
    return L

def k_dt(src):
    chi, clo = split_hi(LOG2E, 16)
    return [f"v_mul_f32 v64, {fhex(chi)}, v{src}", "v_rndne_f32 v65, v64", "v_sub_f32 v64, v64, v65", f"v_fmac_f32 v64, {fhex(clo)}, v{src}",
            "v_exp_f32 v64, v64", "v_cvt_i32_f32 v65, v65", "v_ldexp_f32 v64, v64, v65", "v_cvt_pk_bf16_f32 v64, v64, v64", "v_lshlrev_b32 v64, 16, v64"]
def k_scale(p):
    return [f"v_mul_f32 v{p}, v64, v{p}", f"v_mul_f32 v{p+1}, v64, v{p+1}", f"v_mul_f32 v{p}, {fhex(LOG2E)}, v{p}", f"v_mul_f32 v{p+1}, {fhex(1/(2*math.pi))}, v{p+1}"]
def k_direct(L, p, d, pos, t):
    if pos == 1:
        L.append(f"v_exp_f32 v{t}, v{p}"); L.append(f"v_fract_f32 v{t+1}, v{p+1}")
    else:
        L.append(f"v_mul_f32 v{t}, {fhex(float(pos))}, v{p}"); L.append(f"v_mul_f32 v{t+1}, {fhex(float(pos))}, v{p+1}")
        L.append(f"v_exp_f32 v{t}, v{t}"); L.append(f"v_fract_f32 v{t+1}, v{t+1}")
    L.append(f"v_cos_f32 v{d}, v{t+1}"); L.append(f"v_sin_f32 v{d+1}, v{t+1}")
    L.append(f"v_mul_f32 v{d}, v{d}, v{t}"); L.append(f"v_mul_f32 v{d+1}, v{d+1}, v{t}")
STG = 208
def k_rd(base, ar, off=0):
    L = []
    for ks in range(8):
        L.append(f"ds_read_b64_tr_b16 v[{base+4*ks}:{base+4*ks+1}], v{ar} offset:{off+ks*1024}")
        L.append(f"ds_read_b64_tr_b16 v[{base+4*ks+2}:{base+4*ks+3}], v{ar+1} offset:{off+ks*1024+256}")
    return L
def k_wr(L, wa, q):
    t = STG + 8 * (q & 1)
    L.append(f"ds_write_b128 v{wa+q}, v[{t}:{t+3}]"); L.append(f"ds_write_b128 v{wa+4+q}, v[{t+4}:{t+7}]")
def kgen_x(p, wa):
    L = k_dt(p + 6) + k_scale(p)
    L.append(f"v_mul_f32 v66, v64, v{p+2}"); L.append(f"v_mul_f32 v67, v64, v{p+3}")
    k_direct(L, p, 70, 8, 72)
    cmul(L, 74, p + 4, 66)
    cmul(L, 72, 70, 70)
    cmul(L, 76, 74, 70)
    cur = [74, 76]; nxt = [78, 80]
    for i in range(0, 32, 2):
        if i + 2 < 32:
            cmul(L, nxt[0], cur[0], 72); cmul(L, nxt[1], cur[1], 72)
        t = STG + 8 * ((i >> 3) & 1) + ((i >> 1) & 3)
        L.append(f"v_cvt_pk_bf16_f32 v{t}, v{cur[0]}, v{cur[1]}")
        L.append(f"v_cvt_pk_bf16_f32 v{t+4}, v{cur[0]+1}, v{cur[1]+1}")
        if i & 7 == 6: k_wr(L, wa, i >> 3)
        cur, nxt = nxt, cur
    return L
def kgen_y(p):
    L = k_scale(p)
    lay = {0: [0,1,2,3,4,5,6,7,512,516,520,1024,1032,1536,1544,1544], 1: [256,256,258,260,260,260,262,264,768,772,776,1280,1288,1792,1800,1800]}
    pairs = [(q, k, (lay[k >> 1][4*q + 2*(k & 1)], lay[k >> 1][4*q + 2*(k & 1) + 1])) for q in range(4) for k in range(4)]
    reg = {}; nreg = [66]
    def new(q):
        reg[q] = nreg[0]; nreg[0] += 2; return reg[q]
    k_direct(L, p, new(1), 1, 124)
    k_direct(L, p, new(256), 256, 126)
    plan = [(2,1,1),(512,256,256),(3,2,1),(4,2,2),(258,256,2),(768,512,256),(260,256,4),(5,4,1),(6,4,2),(8,4,4),(7,4,3),(1024,512,512),(262,256,6),(264,256,8),
            (516,512,4),(520,512,8),(772,768,4),(776,768,8),(1280,1024,256),(1536,1024,512),(1032,1024,8),(1792,1024,768),(1288,1280,8),(1544,1536,8),(1800,1792,8)]
    def flush(avail, mx):
        n = 0
        while pairs and n < mx and all(z == 0 or z in avail for z in pairs[0][2]):
            q, k, (a, b) = pairs.pop(0)
            t = STG + 8 * (q & 1) + k
            L.append(f"v_cvt_pk_bf16_f32 v{t}, {'1.0' if a == 0 else 'v%d' % reg[a]}, v{reg[b]}")
            L.append(f"v_cvt_pk_bf16_f32 v{t+4}, {'0' if a == 0 else '-v%d' % (reg[a]+1)}, -v{reg[b]+1}")
            if k == 3: k_wr(L, 44, q)
            n += 1
    for n, (q, a, b) in enumerate(plan):
        assert a + b == q
        av = set(reg)
        cmul(L, new(q), reg[a], reg[b])
        flush(av, 1)
    flush(set(reg), 99)
    assert nreg[0] <= 124 and not pairs
    return L
XF0, XF1, YF0, YF1 = 128, 224, 160, 68
def k_zero():
    return ["v_lshlrev_b32 v60, 4, v1", f"v_add_u32 v61, {KSZ}, v60", "v_subrev_u32 v63, 512, v60", "v_cmp_gt_u32 vcc, 32, v1", "v_mov_b32 v64, 0", "v_mov_b32 v65, 0", "v_cndmask_b32 v61, v63, v61, vcc",
         "v_subrev_u32 v63, 36, v1", "v_min_u32 v63, 2, v63", f"v_mul_u32_u24 v63, {129*16}, v63", "v_cmp_gt_u32 vcc, 36, v1", f"v_add_u32 v63, {KSZ+USZ}, v63", "v_mov_b32 v66, 0",
         "v_cndmask_b32 v61, v63, v61, vcc", "v_add_u32 v61, s13, v61", "v_and_b32 v62, 1, v1", "v_cmp_eq_u32 vcc, 0, v62", "v_add_u32 v63, s13, v60", "v_mov_b32 v67, 0",
         "ds_write_b128 v61, v[64:67]"]
def k_mf(hf):
    x, y = ((XF0, YF0), (XF1, YF1))[hf]
    return [f"v_mfma_f32_32x32x16_bf16 v[192:207], v[{y+4*ks}:{y+3+4*ks}], v[{x+4*ks}:{x+3+4*ks}], {'0' if ks == 0 and hf == 0 else 'v[192:207]'}" for ks in range(8)]
def k_tail(opt):
    L = []
    a = lambda r: f"v{192+r}"
    pk = lambda d, lo, hi: L.append(f"v_cvt_pk_bf16_f32 v{d}, {lo}, {hi}")
    wr = lambda q: L.append(f"ds_write_b128 v63, v[{104+4*q}:{107+4*q}] offset:{64+1024*q}")
    pk(104, a(0), a(1)); pk(105, a(2), a(3)); pk(106, a(4), a(5)); pk(107, a(6), a(7)); wr(0)
    pk(108, a(8), a(8)); pk(109, a(8), a(9)); pk(110, a(9), a(9)); pk(111, a(10), a(10)); wr(1)
    for (z, b) in ((11, 112), (13, 116)):
        L.append(f"v_cndmask_b32 v62, {a(z+1)}, {a(z)}, vcc")
        pk(b, a(z), a(z)); L.append(f"v_mov_b32 v{b+1}, v{b}"); pk(b+2, "v62", a(z+1)); pk(b+3, a(z+1), a(z+1)); wr((b - 104) // 4)
    if opt.get("kdump"):
        L.append("s_lshl_b32 s15, s12, 12")
        L.append(f"s_add_u32 s15, s15, {KD_OFF}")
        for q in range(4): L.append(f"buffer_store_dwordx4 v[{104+4*q}:{107+4*q}], v60, {SW}, s15 offen offset:{1024*q}")
    return L
def rot_phase(dst, sh):
    return [f"s_lshl_b32 {dst}, s7, 1", f"s_add_u32 {dst}, {dst}, s9", f"s_and_b32 {dst}, {dst}, 7", f"s_mul_i32 {dst}, {dst}, 7", f"s_lshr_b32 {dst}, {dst}, 1", f"s_lshl_b32 {dst}, {dst}, {sh}"]
def rot_off(dst, tmp, r, s, sh, on=True):
    if not on: return [f"s_mov_b32 {dst}, {s << sh}"]
    return [f"s_add_u32 {dst}, {r}, {s << sh}", f"s_sub_u32 {tmp}, {r}, {(28 - s) << sh}", f"s_min_u32 {dst}, {dst}, {tmp}"]

VF, VG, VH, VX, VY, VO = 10, 11, 12, 13, 14, 15
XR = 24; UD = 232
def conv_addr():
    L = []; A = L.append
    A("v_lshrrev_b32 v16, 5, v1")
    A(f"v_lshlrev_b32 v{VF}, 6, v16")
    A("v_and_b32 v17, 1, v1")
    A(f"v_lshl_add_u32 v{VF}, v17, 5, v{VF}")
    A("v_bfe_u32 v17, v1, 4, 1")
    A(f"v_lshl_add_u32 v{VF}, v17, 4, v{VF}")
    A("v_bfe_u32 v18, v1, 1, 1")
    A(f"v_lshl_add_u32 v{VF}, v18, 3, v{VF}")
    A("v_bfe_u32 v18, v1, 2, 2")
    A("v_lshlrev_b32 v19, 3, v18")
    A(f"v_sub_u32 v{VF}, v{VF}, v19")
    A("s_add_u32 s15, s13, 32")
    A(f"v_add_u32 v{VF}, s15, v{VF}")
    A("v_and_b32 v19, 3, v1")
    A("v_lshl_add_u32 v19, v17, 2, v19")
    A("v_sub_u32 v20, v19, v16")
    A("v_add_u32 v20, 2, v20")
    A("v_lshrrev_b32 v21, 1, v20")
    A(f"v_lshlrev_b32 v{VG}, 7, v21")
    A("v_and_b32 v20, 1, v20")
    A(f"v_lshl_add_u32 v{VG}, v20, 4, v{VG}")
    A(f"v_lshl_add_u32 v{VG}, v18, 5, v{VG}")
    A(f"s_add_u32 s15, s13, {KSZ}")
    A(f"v_add_u32 v{VG}, s15, v{VG}")
    A(f"v_mul_u32_u24 v{VH}, 129, v18")
    A(f"v_lshl_add_u32 v{VH}, v19, 1, v{VH}")
    A(f"v_add_u32 v{VH}, v{VH}, v16")
    A(f"s_add_u32 s15, s13, {KSZ+USZ-129*16}")
    A(f"v_lshl_add_u32 v{VH}, v{VH}, 4, s15")
    A("v_and_b32 v20, 1, v18")
    A("v_mul_u32_u24 v20, 3, v20")
    A("v_xor_b32 v20, s11, v20")
    A("v_lshrrev_b32 v21, 1, v18")
    A(f"v_lshlrev_b32 v{VX}, 9, v20")
    A("v_lshrrev_b32 v22, 1, v19")
    A(f"v_lshl_add_u32 v{VX}, v22, 7, v{VX}")
    A("v_and_b32 v22, 1, v19")
    A(f"v_lshl_add_u32 v{VX}, v22, 4, v{VX}")
    A(f"v_lshl_add_u32 v{VX}, v16, 3, v{VX}")
    A(f"v_lshl_add_u32 v{VX}, v21, 2, v{VX}")
    A(f"s_add_u32 s15, s13, {KSZ+512}")
    A(f"v_add_u32 v{VX}, s15, v{VX}")
    A(f"v_lshlrev_b32 v{VY}, 9, v20")
    A(f"v_lshl_add_u32 v{VY}, v19, 6, v{VY}")
    A(f"v_lshl_add_u32 v{VY}, v16, 5, v{VY}")
    A(f"v_lshl_add_u32 v{VY}, v21, 4, v{VY}")
    A("v_and_b32 v16, 15, v1")
    A("v_lshrrev_b32 v17, 4, v1")
    A(f"v_lshlrev_b32 v{VO}, 10, v16")
    A(f"v_lshl_add_u32 v{VO}, v17, 4, v{VO}")
    A("s_lshl_b32 s24, s8, 2")
    A("s_add_u32 s24, s24, s10")
    A("s_lshl_b32 s24, s24, 14")
    A("s_lshl_b32 s25, s9, 7")
    A("s_add_u32 s24, s24, s25")
    A("v_lshrrev_b32 v16, 1, v1")
    A("v_lshlrev_b32 v16, 14, v16")
    A("v_and_b32 v17, 1, v1")
    A("v_lshl_add_u32 v16, v17, 6, v16")
    A("s_lshr_b32 s26, s12, 2")
    A("s_lshl_b32 s26, s26, 7")
    A("s_and_b32 s27, s12, 3")
    A("s_lshl_b32 s27, s27, 4")
    A("s_add_u32 s26, s26, s27")
    A(f"s_add_u32 s26, s26, {XND_OFF}")
    A("v_min_u32 v18, 31, v1")
    A("v_lshlrev_b32 v18, 2, v18")
    return L

WW = [5]
def weight(it):
    if isinstance(it, tuple): return 4 if it[0] == "vm" else 0
    if it.startswith("v_mfma"): return 8
    if it.startswith(TRANS): return 2
    if it.startswith("s_waitcnt lgkm"): return 6
    if it.startswith("ds_write_b128"): return WW[0]
    if it.startswith("s_"): return 0.5
    return 1

def ln_code(A, opt, srds):
    A("v_lshrrev_b32 v8, 3, v1")
    A("v_and_b32 v9, 7, v1")
    A("v_lshlrev_b32 v10, 12, v8")
    A("v_lshl_add_u32 v10, v9, 4, v10")
    A("s_and_b32 s12, s3, 3")
    A("s_lshr_b32 s13, s3, 2")
    A("s_lshl_b32 s10, s8, 16")
    A("s_lshl_b32 s11, s12, 10")
    A("s_add_u32 s10, s10, s11")
    A("s_lshl_b32 s11, s13, 15")
    A("s_add_u32 s10, s10, s11")
    A("s_mov_b32 s50, 0x200000"); A("s_mov_b32 s51, 0x20000")
    A(f"s_mov_b32 s15, {EP_OFF}")
    A("s_waitcnt lgkmcnt(0)")
    A("s_mov_b64 s[48:49], s[16:17]")
    X = 128; F = 64
    for q in range(8): A(f"buffer_load_dwordx4 v[{X+4*q}:{X+4*q+3}], v10, {SX}, s10 offen offset:{q*128}")
    A("s_load_dword s34, s[46:47], s15")
    for x in srds(): A(x)
    RS = 1056
    A(f"s_mul_i32 s10, s12, {16*RS}")
    A(f"s_mul_i32 s11, s13, {RS}")
    A("s_add_u32 s11, s11, s10")
    A(f"v_mul_u32_u24 v11, {2*RS}, v8")
    A("v_lshl_add_u32 v11, v9, 4, v11")
    A("v_add_u32 v11, s11, v11")
    A("v_bfe_u32 v12, v1, 2, 2")
    A("v_and_b32 v13, 1, v1")
    A("v_lshl_add_u32 v12, v12, 1, v13")
    A(f"v_mul_u32_u24 v12, {RS}, v12")
    A("v_lshrrev_b32 v13, 4, v1")
    A("v_lshl_add_u32 v12, v13, 4, v12")
    A("v_bfe_u32 v13, v1, 1, 1")
    A("v_lshl_add_u32 v12, v13, 3, v12")
    A("s_lshl_b32 s11, s13, 9")
    A("s_add_u32 s10, s10, s11")
    A("v_add_u32 v12, s10, v12")
    A("v_lshlrev_b32 v13, 5, v8")
    A("s_lshl_b32 s10, s8, 9")
    A("s_lshl_b32 s11, s13, 8")
    A("s_add_u32 s10, s10, s11")
    A("s_lshl_b32 s11, s12, 3")
    A("s_add_u32 s10, s10, s11")
    A(f"s_add_u32 s10, s10, {ST_OFF}")
    A("s_lshl_b32 s11, s8, 16")
    A("s_lshl_b32 s12, s12, 14")
    A("s_add_u32 s11, s11, s12")
    A("s_lshl_b32 s13, s13, 13")
    A("s_add_u32 s11, s11, s13")
    A(f"s_add_u32 s11, s11, {XND_OFF}")
    A("s_mov_b32 s14, 0x3f803f80")
    def red8(r):
        A(f"v_add_f32_dpp v{r}, v{r}, v{r} quad_perm:[1,0,3,2] row_mask:0xf bank_mask:0xf")
        A(f"v_add_f32_dpp v{r}, v{r}, v{r} quad_perm:[2,3,0,1] row_mask:0xf bank_mask:0xf")
        A(f"v_add_f32_dpp v{r}, v{r}, v{r} row_half_mirror row_mask:0xf bank_mask:0xf")
    for r in range(16, 22): A(f"v_mov_b32 v{r}, 0")
    stamp(A, opt, 1)
    for q in range(32):
        if q % 4 == 0: A(f"s_waitcnt vmcnt({7 - q // 4})")
        A(f"v_dot2c_f32_bf16 v{16+(q&1)}, s14, v{X+q}")
        A(f"v_lshlrev_b32 v{F+2*q}, 16, v{X+q}")
        A(f"v_and_b32 v{F+2*q+1}, 0xffff0000, v{X+q}")
    stamp(A, opt, 2)
    A("v_add_f32 v16, v16, v17")
    red8(16)
    A(f"v_mul_f32 v16, {fhex(-1/512)}, v16")
    for q in range(32):
        A(f"v_pk_add_f32 v[{F+2*q}:{F+2*q+1}], v[{F+2*q}:{F+2*q+1}], v[16:17] op_sel_hi:[1,0]")
    for q in range(32):
        a = 18 + 2 * (q & 1)
        A(f"v_pk_fma_f32 v[{a}:{a+1}], v[{F+2*q}:{F+2*q+1}], v[{F+2*q}:{F+2*q+1}], v[{a}:{a+1}]")
    A("v_pk_add_f32 v[18:19], v[18:19], v[20:21]")
    A("v_cvt_pk_bf16_f32 v17, v16, v16")
    A("v_add_f32 v18, v18, v19")
    red8(18)
    A("s_waitcnt lgkmcnt(0)")
    A("s_add_u32 s34, s34, 2")
    A("s_or_b32 s34, s34, 1")
    A(f"v_mul_f32 v18, {fhex(1/512)}, v18")
    A("v_cvt_pk_bf16_f32 v18, v18, v18")
    A("v_and_b32 v18, 0xffff0000, v18")
    A(f"v_add_f32 v18, {fhex(1e-5)}, v18")
    A("v_cvt_pk_bf16_f32 v18, v18, v18")
    A("v_and_b32 v18, 0xffff0000, v18")
    A("v_sqrt_f32 v18, v18")
    A("v_and_b32 v19, 0xffff0000, v17")
    A("v_mov_b32 v23, s34")
    A("v_cvt_pk_bf16_f32 v22, v19, v18")
    A("v_sub_f32 v19, v19, v16")
    A("v_and_b32 v20, 0xffff0000, v22")
    A("v_rcp_f32 v20, v20")
    A("s_mov_b32 exec_lo, 0x01010101"); A("s_mov_b32 exec_hi, 0x01010101")
    A(f"buffer_store_dwordx2 v[22:23], v13, {SW}, s10 offen sc1")
    A("s_mov_b64 exec, -1")
    A("v_mul_f32 v21, v19, v20")
    for q in range(32):
        A(f"v_pk_fma_f32 v[{F+2*q}:{F+2*q+1}], v[{F+2*q}:{F+2*q+1}], v[20:21], v[20:21] op_sel:[0,0,1] op_sel_hi:[1,0,1]")
    for q in range(32):
        A(f"v_cvt_pk_bf16_f32 v{X+q}, v{F+2*q}, v{F+2*q+1}")
        if q & 3 == 3: A(f"ds_write_b128 v11, v[{X+q-3}:{X+q}] offset:{(q>>2)*128}")
    A("v_lshlrev_b32 v13, 4, v1")
    A("s_waitcnt lgkmcnt(0)")
    A("s_barrier")
    stamp(A, opt, 3)
    for blk in range(8):
        b = 64 + 4 * blk
        A(f"ds_read_b64_tr_b16 v[{b}:{b+1}], v12 offset:{blk*64}")
        A(f"ds_read_b64_tr_b16 v[{b+2}:{b+3}], v12 offset:{blk*64+8*RS}")
        if blk == 6: A("s_waitcnt lgkmcnt(12)")
    for blk in range(8):
        A(f"s_waitcnt lgkmcnt({14-2*blk})")
        A(f"buffer_store_dwordx4 v[{64+4*blk}:{67+4*blk}], v13, {SW}, s11 offen offset:{(blk&3)*1024} sc1")
        if blk == 3: A("s_add_u32 s11, s11, 4096")

def gen_kf(opt):
    A = Asm()
    ld = opt.get("ldflag", "")
    tmo = opt.get("tmo", 0x40000)
    def srds():
        return ["s_mov_b64 s[60:61], s[40:41]", f"s_mov_b32 s62, {1792*1024}", "s_mov_b32 s63, 0x20000",
                "s_mov_b64 s[64:65], s[42:43]", "s_mov_b32 s66, 0x200000", "s_mov_b32 s67, 0x20000",
                "s_mov_b64 s[68:69], s[46:47]", f"s_mov_b32 s70, {WS_SIZE}", "s_mov_b32 s71, 0x20000",
                "s_mov_b64 s[72:73], s[44:45]", "s_mov_b32 s74, 256", "s_mov_b32 s75, 0x20000"]
    A("s_cmp_ge_u32 s2, 256")
    A("s_cbranch_scc1 .L_end")
    A("s_load_dwordx16 s[16:31], s[0:1], 0")
    A("s_load_dwordx16 s[32:47], s[0:1], 64")
    stamp(A, opt, 0)
    if opt.get("stamps"): A("s_memrealtime s[76:77]")
    A("v_lshrrev_b32 v2, 6, v0")
    A("v_and_b32 v1, 63, v0")
    A("v_readfirstlane_b32 s3, v2")
    A("s_and_b32 s6, s2, 7")
    A("s_lshr_b32 s7, s2, 3")
    A("s_lshr_b32 s4, s6, 2")
    A("s_lshl_b32 s4, s4, 2")
    A("s_and_b32 s5, s7, 3")
    A("s_add_u32 s4, s4, s5")
    A("s_lshl_b32 s8, s6, 2")
    A("s_add_u32 s8, s8, s5")
    A("s_lshr_b32 s9, s7, 2")
    A("s_and_b32 s5, s6, 3")
    A("s_cmp_ge_u32 s7, 28")
    A("s_cbranch_scc1 .L_ln")
    A("s_cmp_lt_u32 s3, 4")
    A("s_cbranch_scc0 .L_help")
    if opt.get("codepf", 1):
        A("s_getpc_b64 s[78:79]")
        A(".L_pc:")
        A("s_sub_u32 s78, s78, .L_pc-KSTART")
        A("s_subb_u32 s79, s79, 0")
        A("s_lshl_b32 s10, s9, 2")
        A("s_add_u32 s10, s10, s3")
        A("s_lshl_b32 s10, s10, 11")
        A("v_lshl_add_u32 v2, v1, 5, s10")
        A("v_min_u32 v2, CODE_END-KSTART, v2")
        A("global_load_dword v14, v2, s[78:79]")
    A("s_branch .L_w03")
    A(".L_help:")
    A("s_sub_u32 s10, s3, 4")
    A("s_and_b32 s11, s10, 1")
    A("s_lshr_b32 s12, s10, 1")
    A("v_lshrrev_b32 v8, 3, v1")
    A("v_and_b32 v9, 7, v1")
    A("v_lshrrev_b32 v10, 4, v1")
    g = opt.get("rot", "s9")
    if g == "s9": A("s_add_u32 s79, s4, s9")
    elif g == 0: A("s_mov_b32 s79, s4")
    else:
        A(f"s_and_b32 s79, s9, {g[0]}"); A(f"s_mul_i32 s79, s79, {g[1]}"); A("s_add_u32 s79, s79, s4")
    A("s_mul_i32 s101, s5, 7")
    A("s_add_u32 s101, s101, s9")
    A(f"s_lshl_b32 s13, s12, 14")
    A(f"s_add_u32 s13, s13, {CB}")
    A("s_lshl_b32 s100, s10, 13")
    A("s_mov_b32 s50, 0x200000"); A("s_mov_b32 s51, 0x20000")
    A("s_cmp_eq_u32 s11, 0")
    A("s_cbranch_scc0 .L_kw")
    if opt.get("dprio", 0): A(f"s_setprio {opt['dprio']}")
    vm = Cnt(A, "vmcnt", 63)
    A("v_xor_b32 v11, v9, v10")
    A("v_lshlrev_b32 v11, 4, v11")
    A("v_lshl_add_u32 v2, v8, 10, v11")
    A("v_xor_b32 v3, 64, v2")
    A("v_add_u32 v3, 7168, v3")
    A("v_add_u32 v4, 14336, v2")
    A("v_add_u32 v5, 14336, v3")
    A("s_lshl_b32 s78, s4, 2")
    A("s_add_u32 s78, s78, s10")
    A("s_lshl_b32 s78, s78, 16")
    A("v_and_b32 v10, 1, v10")
    A("v_lshlrev_b32 v11, 1, v10")
    A("v_xor_b32 v11, v9, v11")
    A("v_lshlrev_b32 v11, 4, v11")
    A("v_lshl_add_u32 v12, s10, 3, v8")
    A("v_mul_u32_u24 v12, 3584, v12")
    A("v_add_u32 v6, v12, v11")
    A("v_xor_b32 v7, 64, v6")
    A(f"v_add_u32 v32, {8*3584-1024}, v6")
    A(f"v_add_u32 v33, {8*3584-1024}, v7")
    A(f"s_mov_b32 s54, {512*3584}"); A("s_mov_b32 s55, 0x20000")
    A(f"s_mov_b32 s58, {512*3584}"); A("s_mov_b32 s59, 0x20000")
    A("s_lshl_b32 s101, s101, 7")
    A(f"s_mov_b32 s15, {EP_OFF}")
    def wdv():
        return ["v_lshlrev_b32 v10, 2, v10", "v_xor_b32 v9, v9, v10", "v_lshlrev_b32 v9, 4, v9", "v_lshl_add_u32 v8, v8, 10, v9", "v_add_u32 v9, 7168, v8"]
    for x in wdv(): A(x)
    A("s_lshr_b32 s14, s100, 2")
    A(f"s_add_u32 s14, s14, {WR}")
    A("s_cmp_ge_u32 s7, 28")
    A("s_waitcnt lgkmcnt(0)")
    A("s_mov_b64 s[52:53], s[36:37]")
    A("s_mov_b64 s[56:57], s[38:39]")
    A("s_mov_b64 s[48:49], s[16:17]")
    A("s_cbranch_scc1 .L_daux")
    stamp(A, opt, 1, 2)
    def dx(i, e, tb):
        L = []
        if e == 0 and tb == 0:
            L += [f"s_add_u32 s18, s79, {i}", "s_and_b32 s18, s18, 7", "s_lshl_b32 s18, s18, 7", "s_add_u32 s18, s18, s78"]
        else: L.append("s_add_u32 s18, s18, 32768")
        L.append(f"s_add_u32 m0, s100, {(i % 3) * 32768 + e * 8192 + tb * 4096}")
        for q in range(4): L.append(("vm", f"buffer_load_dwordx4 v{2+q}, {SX}, s18 offen" + (f" offset:{q*1024}" if q else "") + f" lds{ld}", ("x", i)))
        return L
    def dw(h):
        if h & 1: L = [f"s_add_u32 s19, s19, {32*3584}"]
        else: L = [f"s_add_u32 s19, s79, {h >> 1}", "s_and_b32 s19, s19, 7", f"s_mul_i32 s19, s19, {64*3584}", "s_add_u32 s19, s19, s101"]
        L += [f"s_add_u32 m0, s14, {(h & 3) * 8192}",
              ("vm", f"buffer_load_dwordx4 v6, {SG}, s19 offen lds{ld}", ("w", h)), ("vm", f"buffer_load_dwordx4 v32, {SG}, s19 offen offset:1024 lds{ld}", ("w", h)),
              f"s_add_u32 m0, s14, {(h & 3) * 8192 + 2048}",
              ("vm", f"buffer_load_dwordx4 v7, {SU}, s19 offen lds{ld}", ("w", h)), ("vm", f"buffer_load_dwordx4 v33, {SU}, s19 offen offset:1024 lds{ld}", ("w", h))]
        return L
    wld = opt.get("wld", "")
    wrot = opt.get("wrot", 1)
    def dd2(s):
        o = RREG[s >> 2] + (s & 3) * 2048
        L = rot_off("s47", "s20", "s46", s, 14, wrot)
        for e in range(2):
            if e: L.append(f"s_add_u32 s47, s47, {28 * 16384}")
            L += [f"s_add_u32 m0, s100, {o + e * 8192}", ("vm", f"buffer_load_dwordx4 v8, {SD}, s47 offen lds{wld}", ("d", s)),
                  ("vm", f"buffer_load_dwordx4 v9, {SD}, s47 offen offset:1024 lds{wld}", ("d", s))]
        return L
    def emit(c, it):
        if isinstance(it, tuple):
            if it[0] == "vm": c.op(it[1], it[2])
            elif it[0] == "vmwait": c.wait(*it[1:])
            elif it[0] == "call": it[1]()
            else: raise Exception(it)
        else: A(it)
    def late_setup(tagload=True, wd=True):
        return (["s_load_dword s34, s[46:47], s15"] if tagload else []) + srds() + \
               (["s_mul_i32 s46, s10, 28", "s_lshl_b32 s46, s46, 14", "s_lshl_b32 s47, s9, 7", "s_add_u32 s46, s46, s47", "v_add_u32 v8, s46, v8", "v_add_u32 v9, s46, v9"] + rot_phase("s46", 14) if wd else []) + \
               ["s_lshl_b32 s15, s2, 2", "s_load_dword s17, s[32:33], s15", "s_lshl_b32 s15, s2, 1", "s_add_u32 s12, s12, s15"]
    tagfix = ["s_add_u32 s34, s34, 2", "s_or_b32 s34, s34, 1"]
    S = []
    for h in range(16):
        if h & 1 == 0:
            xs = [(h - 4 if h >= 6 else 1 if h == 4 else -1, h, dx(h >> 1, e, tb)) for e in range(2) for tb in range(2)]
            w = [(h - 3 if h >= 4 else -1, h, dw(h))]
            S += (w + xs) if h == 0 or opt.get("wfirst") else (xs + w)
        else: S.append((h - 3 if h >= 4 else -1, h, dw(h)))
    for s_ in range(8): S.append((12 if s_ < 4 else 14, 99, dd2(s_)))
    quota = opt.get("quota", [8, 4, 4, 4, 4])
    extra = late_setup() + conv_addr()
    for h in range(-1, 16):
        if h >= 0:
            if h == 0: stamp(A, opt, 8, 2)
            if opt.get("stamps") == 3 and h in (2, 4, 6, 8): stamp(A, opt, h - 1, 3)
            if opt.get("stamps") == 4 and h in (9, 11, 13, 15): stamp(A, opt, h - 8, 4)
            vm.wait(("w", h), ("x", h >> 1))
            if h == 0: stamp(A, opt, 9, 2); stamp(A, opt, 1)
            if opt.get("stamps") == 3 and h in (2, 4, 6, 8): stamp(A, opt, h, 3)
            if opt.get("stamps") == 4 and h in (9, 11, 13, 15): stamp(A, opt, h - 7, 4)
            bstamp(A, opt, h, 0)
            A("s_barrier")
            bstamp(A, opt, h, 1)
            if h == 0: stamp(A, opt, 2)
        q = quota[h + 1] if h + 1 < len(quota) else quota[-1]
        n = 0
        while True:
            c = [k for k, t in enumerate(S) if t[0] <= h]
            if not c: break
            k = c[0]
            if n >= q and S[k][1] > h + 1 and h < 15: break
            for it in S.pop(k)[2]: emit(vm, it)
            n += 1
            if h == -1 and n in (1, 3, 5, 6, 7, 8): stamp(A, opt, {1: 2, 3: 3, 5: 4, 6: 5, 7: 6, 8: 7}[n], 2)
        if h == -1 or h >= opt.get("xslice", 0):
            for _ in range(len(late_setup()) if h == -1 else opt.get("xper", 12)):
                if extra: A(extra.pop(0))
        if h == 1:
            A("s_waitcnt lgkmcnt(0)")
            for x in tagfix: A(x)
    assert not S and not extra
    A("s_barrier")
    stamp(A, opt, 3)
    A(".L_dpost:")
    for s_ in range(8, 16):
        for it in dd2(s_): A(it if isinstance(it, str) else it[1])
    A("s_lshl_b32 s15, s10, 1")
    A(f"s_add_u32 s15, s15, {FL+40}")
    A("v_mov_b32 v16, s15")
    A(f"s_mov_b32 s28, {tmo * 8}")
    A(".L_kf:")
    A("ds_read_b32 v17, v16")
    A("s_sub_u32 s28, s28, 1")
    A("s_cbranch_scc1 .L_conv")
    A("s_waitcnt lgkmcnt(0)")
    A("v_readfirstlane_b32 s15, v17")
    A("s_cmp_eq_u32 s15, 0")
    A("s_cbranch_scc0 .L_conv")
    A("s_sleep 1")
    A("s_branch .L_kf")
    A(".L_daux:")
    for x in late_setup(False) + conv_addr(): A(x)
    for h in range(16):
        A("s_barrier")
        if h & 1:
            for it in dd2(h >> 1): A(it if isinstance(it, str) else it[1])
    A("s_barrier")
    stamp(A, opt, 5)
    A("s_branch .L_dpost")
    A(".L_ln:")
    ln_code(A, opt, srds)
    A("s_waitcnt vmcnt(0)")
    stamp(A, opt, 4)
    A("s_barrier")
    A("s_cmp_lt_u32 s3, 4")
    A("s_cbranch_scc0 .L_help")
    A("s_cmp_lg_u32 s3, 0")
    A("s_cbranch_scc1 .L_w03")
    A("s_lshl_b32 s13, s8, 2")
    A("v_mov_b32 v13, 0")
    A("v_mov_b32 v16, 1")
    A("s_mov_b64 exec, 1")
    A(f"buffer_store_dword v16, v13, {SB}, s13 offen sc1")
    A("s_mov_b64 exec, -1")
    A("s_branch .L_w03")
    A(".L_auxbar:")
    for _ in range(17): A("s_barrier")
    stamp(A, opt, 5)
    A("s_branch .L_g2")
    A(".L_kw:")
    if opt.get("kprio", 0): A(f"s_setprio {opt['kprio']}")
    vk = Cnt(A, "vmcnt", 63)
    A("s_lshl_b32 s14, s2, 1")
    A("s_add_u32 s14, s14, s12")
    A("s_lshl_b32 s15, s14, 1")
    A("v_mov_b32 v35, s15")
    A("s_lshl_b32 s14, s14, 8")
    A("v_lshl_add_u32 v34, v1, 1, s14")
    for r in range(36, 41): A(f"v_mov_b32 v{r}, 0")
    A(f"s_add_u32 s14, s13, {TB}")
    A(f"s_mov_b32 s15, {EP_OFF}")
    A("s_waitcnt lgkmcnt(0)")
    vk.op("global_load_short_d16_hi v36, v35, s[30:31]", "par")
    for hf in range(2):
        for k in range(2): vk.op(f"global_load_short_d16_hi v{37+2*hf+k}, v34, s[{18+2*k}:{19+2*k}]" + (" offset:128" if hf else ""), ("par", hf))
    A("s_mov_b64 s[48:49], s[16:17]")
    A("s_cmp_ge_u32 s7, 28")
    A("s_cbranch_scc1 .L_ktag")
    A("s_load_dword s34, s[46:47], s15")
    A(".L_ktag:")
    A("v_bfe_u32 v4, v1, 4, 1")
    A("v_lshlrev_b32 v2, 11, v4")
    A("v_lshrrev_b32 v4, 5, v1")
    A("v_lshl_add_u32 v2, v4, 10, v2")
    A("v_bfe_u32 v4, v1, 2, 2")
    A("v_lshl_add_u32 v2, v4, 7, v2")
    A("v_and_b32 v4, 3, v1")
    A("v_lshl_add_u32 v2, v4, 3, v2")
    A("v_bfe_u32 v4, v1, 3, 2")
    A("v_lshl_add_u32 v2, v4, 5, v2")
    A(f"v_add_u32 v2, {WR}, v2")
    A("s_lshl_b32 s15, s12, 6")
    A("v_xor_b32 v2, s15, v2")
    A("v_xor_b32 v3, 32, v2")
    for r in range(56, 60): A(f"v_mov_b32 v{r}, 0x3f803f80")
    A("s_lshl_b32 s35, s101, 13")
    A("s_lshl_b32 s15, s12, 9")
    A("s_add_u32 s35, s35, s15")
    A(f"s_add_u32 s35, s35, {CS_OFF}")
    A("s_lshl_b32 s78, s4, 11")
    A("s_lshl_b32 s15, s12, 10")
    A("s_add_u32 s78, s78, s15")
    A(f"s_add_u32 s78, s78, {ST_OFF}")
    A("v_lshlrev_b32 v4, 3, v1")
    A("v_lshlrev_b32 v5, 4, v1")
    A("s_lshl_b32 s15, s12, 9")
    A(f"s_add_u32 s15, s15, {STL}")
    A("v_add_u32 v6, s15, v4")
    A("s_lshl_b32 s15, s12, 8")
    A(f"s_add_u32 s15, s15, {CSL}")
    A("v_lshl_add_u32 v7, v1, 2, s15")
    A("s_lshl_b32 s15, s12, 14")
    A("s_add_u32 s15, s15, 65536")
    for x in kgen_addr(): A(x)
    kx = late_setup(False, False) + conv_addr()
    for _ in range(opt.get("kearly", 99)):
        if kx: A(kx.pop(0))
    A("v_and_b32 v60, 56, v4")
    A(f"v_add_u32 v60, {FL}, v60")
    A("v_mov_b32 v62, 0"); A("v_mov_b32 v63, 0")
    A("ds_write_b64 v60, v[62:63]")
    stamp(A, opt, 1)
    nlab = [0]
    def mainonly(items):
        nlab[0] += 1
        return ["s_cmp_ge_u32 s7, 28", f"s_cbranch_scc1 .L_mo{nlab[0]}"] + items + [f".L_mo{nlab[0]}:"]
    def cspart(h):
        R = []; M = []
        for k in range(2):
            for t in range(2):
                b = 192 + 8 * k + 4 * t; o = h * 8192 + k * 4096
                R += [f"ds_read_b64_tr_b16 v[{b}:{b+1}], v{2+t} offset:{o}", f"ds_read_b64_tr_b16 v[{b+2}:{b+3}], v{2+t} offset:{o+512}"]
                c = f"v[{160+16*t}:{175+16*t}]"
                M.append(f"v_mfma_f32_32x32x16_bf16 {c}, v[56:59], v[{b}:{b+3}], {'0' if h == 0 and k == 0 else c}")
        return R, M
    GR = 20; SR = 100
    def gloads(c):
        for k in range(8):
            c(f"buffer_load_dwordx2 v[{GR+2*k}:{GR+2*k+1}], v4, {SW}, s35 offen" + (f" offset:{(k&3)*1024}" if k & 3 else "") + " sc1")
            if k == 3: A("s_add_u32 s35, s35, 4096")
        A("s_sub_u32 s35, s35, 4096")
        c(f"buffer_load_dwordx4 v[{SR}:{SR+3}], v5, {SW}, s78 offen sc1")
    def gtest():
        t = [GR + 2 * k + 1 for k in range(8)] + [SR + 1, SR + 3]
        A(f"v_xor_b32 v54, s34, v{t[0]}")
        for k in range(1, 10): A(f"v_xor_b32 v55, s34, v{t[k]}"); A("v_or_b32 v54, v54, v55")
        A("v_cmp_ne_u32 s[30:31], 0, v54")
        A("s_cmp_eq_u64 s[30:31], 0")
    def gissue():
        A("s_cmp_ge_u32 s7, 28"); A("s_cbranch_scc1 .L_gi")
        gloads(A)
        A(".L_gi:")
        vk.op(f"buffer_load_dword v19, v18, {SB}, 0 offen sc1", "poll")
    def gcheck():
        vk.wait("poll")
        A("s_cmp_ge_u32 s7, 28"); A("s_cbranch_scc1 .L_gdone")
        A(f"s_mov_b32 s28, {tmo}")
        A(".L_gt:")
        gtest()
        A("s_cbranch_scc1 .L_gok")
        A("s_sub_u32 s28, s28, 1")
        A("s_cbranch_scc1 .L_gok")
        A("s_sleep 2")
        gloads(A)
        A("s_waitcnt vmcnt(0)")
        A("s_branch .L_gt")
        A(".L_gok:")
        for st in (2, 4, 8):
            for k in range(0, 16, 2 * st): A(f"v_add_f32 v{GR+k}, v{GR+k}, v{GR+k+st}")
        A(f"v_mov_b32 v{SR+1}, v{SR+2}")
        A(f"v_cvt_pk_bf16_f32 v{GR+1}, v{GR}, v{GR}")
        A(f"v_and_b32 v{GR+1}, 0xffff0000, v{GR+1}")
        A(f"v_sub_f32 v{GR}, v{GR}, v{GR+1}")
        A(f"v_cvt_pk_bf16_f32 v{GR}, v{GR+1}, v{GR}")
        A(f"ds_write_b64 v6, v[{SR}:{SR+1}]")
        A(f"ds_write_b32 v7, v{GR}")
        A(".L_gdone:")
    def pcheck():
        A(f"s_mov_b32 s28, {tmo}")
        A(".L_pt:")
        A("v_cmp_eq_u32 s[30:31], 0, v19")
        A("s_cmp_eq_u64 s[30:31], 0")
        A("s_cbranch_scc1 .L_pok")
        A("s_sub_u32 s28, s28, 1")
        A("s_cbranch_scc1 .L_pok")
        A("s_sleep 2")
        A(f"buffer_load_dword v19, v18, {SB}, 0 offen sc1")
        A("s_waitcnt vmcnt(0)")
        A("s_branch .L_pt")
        A(".L_pok:")
        for q in range(4):
            A(f"s_add_u32 m0, s13, {KSZ+512+1024*q}")
            vk.op(f"buffer_load_dwordx4 v16, {SW}, s26 offen sc1 lds", "u")
            if q < 3: A("s_add_u32 s26, s26, 0x80000")
    WW[0] = opt.get("ww", 5)
    vk.wait(("par", 0))
    for x in k_dt(36) + kgen_y(37): A(x)
    work = kx + [("vmwait", ("par", 1))] + kgen_y(39) + k_rd(YF1, 52) + k_zero()
    budget = opt.get("budget", 50)
    PS = opt.get("pollslice", 11)
    stamp(A, opt, 8)
    for h in range(16):
        if opt.get("stamps") == 3 and h in (2, 4, 6, 8): stamp(A, opt, h - 1, 3); stamp(A, opt, h, 3)
        if opt.get("stamps") == 4 and h in (9, 11, 13, 15): stamp(A, opt, h - 8, 4); stamp(A, opt, h - 7, 4)
        bstamp(A, opt, h, 0)
        A("s_barrier")
        bstamp(A, opt, h, 1)
        if h == 0: stamp(A, opt, 2)
        b = budget; post = []
        if h < 2:
            R, M = cspart(h)
            for x in R: A(x)
            if h == 0:
                for x in k_rd(XF0, 54) + k_rd(XF1, 54, 8192): A(x)
            post = ["s_waitcnt lgkmcnt(0)"] + M
            b = 0
        if h == 2:
            post = mainonly(tagfix + ["s_and_b32 s15, s79, 7", "s_lshl_b32 s15, s15, 10", "s_add_u32 s15, s15, s35", "s_mov_b32 s30, -1", "s_mov_b32 s31, 0", "v_mov_b32 v55, s34",
                             "v_cndmask_b32 v54, v176, v160, s[30:31]", f"buffer_store_dwordx2 v[54:55], v4, {SW}, s15 offen sc1"])
            for x in post: A(x)
            post = []; b -= 10
            for x in k_rd(YF0, 52): A(x)
            b -= 16
        pfs = opt.get("pfs", [])
        if isinstance(pfs, int): pfs = [pfs] * 4
        if h in pfs:
            A("s_cmp_ge_u32 s7, 28"); A(f"s_cbranch_scc1 .L_pfx{h}")
            A("s_lshl_b32 s15, s7, 1"); A("s_bfe_u32 s30, s10, 0x10001"); A("s_add_u32 s15, s15, s30"); A("s_lshl_b32 s15, s15, 15")
            A("v_lshlrev_b32 v8, 7, v1")
            for q in range(4):
                if pfs[q] != h: continue
                A(f"s_add_u32 s30, s15, {8192*q}")
                A(f"buffer_load_dword v{41+q if q < 3 else 9}, v8, {SD}, s30 offen{opt.get('pfl', '')}")
            A(f".L_pfx{h}:")
            b -= 10
        if h == opt.get("pf3", -1):
            A("s_cmp_ge_u32 s7, 28"); A(f"s_cbranch_scc1 .L_pf3")
            A("s_lshl_b32 s15, s7, 1"); A("s_bfe_u32 s30, s10, 0x10001"); A("s_add_u32 s15, s15, s30"); A("s_lshl_b32 s15, s15, 15")
            A("v_and_b32 v8, 31, v1"); A("v_lshlrev_b32 v8, 10, v8")
            A(f"buffer_load_dword v9, v8, {SD}, s15 offen offset:384")
            A(f".L_pf3:")
            b -= 10
        if h == PS: assert not work
        if h == PS: gissue(); b -= 40
        if h == PS + 2: b -= 60
        while work and b > 0:
            it = work.pop(0); b -= weight(it)
            kx = opt.get("kx")
            if kx == "nowrite" and isinstance(it, str) and it.startswith("ds_write_b32"): continue
            if kx == "novalu" and isinstance(it, str) and it.startswith("v_") and not it.startswith("v_mfma"): continue
            if kx == "nocvt" and isinstance(it, str) and it.startswith("v_cvt_pk"): continue
            if kx == "nop" and isinstance(it, str) and it.startswith("v_") and not it.startswith("v_mfma"): it = "s_nop 0"
            emit(vk, it)
        for x in post: A(x)
        if h == PS + 2: gcheck(); pcheck()
        if h == 14: A("s_waitcnt lgkmcnt(0)")
    assert not work, f"kgen not finished {len(work)}"
    A("s_barrier")
    stamp(A, opt, 3)
    for x in k_mf(0) + k_mf(1): A(x)
    A("s_lshl_b32 s15, s10, 1")
    A(f"s_add_u32 s15, s15, {FL+38}")
    A("v_mov_b32 v16, s15")
    for x in k_tail(opt): A(x)
    A("s_waitcnt vmcnt(0) lgkmcnt(0)")
    A("ds_write_b32 v16, v16")
    A(".L_conv:")
    A(f"s_setprio {opt.get('prio', 0)}")
    if opt.get("xearly"):
        A(f"buffer_load_dwordx4 v[{XR}:{XR+3}], v{VO}, {SX}, s24 offen")
        A(f"buffer_load_dwordx4 v[{XR+4}:{XR+7}], v{VO}, {SX}, s24 offen offset:64")
    ZA = 64; FR = 128; U = 32
    def Freg(st, q): return FR + st * 64 + q * 4
    def Greg(st, d): return FR + st * 64 + 32 + d * 4
    def ldF(w, q):
        b = Freg(w & 1, q); pp = 4 * q + w
        return [f"ds_read_b64_tr_b16 v[{b}:{b+1}], v{VF} offset:{128*pp+32}", f"ds_read_b64_tr_b16 v[{b+2}:{b+3}], v{VF} offset:{128*pp}"]
    def ldG(w, d):
        b = Greg(w & 1, d)
        return [f"ds_read_b128 v[{b}:{b+3}], v{VG} offset:{512*d+128*(3-w)}"]
    A("s_waitcnt lgkmcnt(0)")
    A("s_cmp_eq_u32 s11, 0")
    A("s_cbranch_scc0 .L_t1")
    for ty in range(2):
        if ty: A(".L_t1:")
        tiles = [0, 3, 4, 7] if ty == 0 else [1, 2, 5, 6]
        nf = tiles[-1] + 1
        prs = [(q, at - q, ti) for ti, at in enumerate(tiles) for q in range(at + 1)]
        prs.sort(key=lambda x: (max(x[0], x[1]), x[2]))
        seq = []; rem = prs[:]
        while rem:
            k = 0
            if seq and rem[0][2] == seq[-1][2]:
                for kk in range(1, min(4, len(rem))):
                    if rem[kk][2] != seq[-1][2]: k = kk; break
            seq.append(rem.pop(k))
        def loads(w):
            L = []
            for i in range(nf): L.append((("F", i), ldF(w, i))); L.append((("G", i), ldG(w, i)))
            return L
        first = {}
        for w in range(4):
            if w == 0:
                L = loads(0); flat = []; pos = {}
                for key, ins in L:
                    flat += ins; pos[key] = len(flat)
                issued = 0
                def pump(upto):
                    nonlocal issued
                    while issued < min(upto, len(flat)): A(flat[issued]); issued += 1
                flat = flat + sum((ins for _, ins in loads(1)), [])
                pump(12)
            else:
                A("s_waitcnt lgkmcnt(0)")
                flat = sum((ins for _, ins in loads(w + 1)), []) if w < 3 else \
                    [f"ds_read_b32 v{U+4*p+b}, v{VX} offset:{2048*p+32*b}" for p in range(2) for b in range(4)]
                issued = 0
                if w == 3:
                    A("s_lshl_b32 s15, s10, 2")
                    A(f"s_add_u32 s15, s15, {FL}")
                    A("v_mov_b32 v16, s15")
                    A("v_mov_b32 v17, s34")
                if w == opt.get("wflagw", 2) and ty == 0:
                    A(f"v_mov_b32 v18, {FL}")
                    A("v_mov_b32 v19, 1")
                    A("s_waitcnt vmcnt(0)")
                    A("s_mov_b64 exec, 1")
                    A("ds_add_u32 v18, v19")
                    A("s_mov_b64 exec, -1")
            waited = 0
            for n, (q, d, ti) in enumerate(seq):
                if w == 0:
                    need_ = max(pos[("F", q)], pos[("G", d)])
                    if need_ > waited:
                        pump(need_)
                        A(f"s_waitcnt lgkmcnt({min(15, issued - need_)})"); waited = need_
                c = f"v[{ZA+16*ti}:{ZA+16*ti+15}]"
                a = Freg(w & 1, q); b = Greg(w & 1, d)
                A(f"v_mfma_f32_32x32x16_bf16 {c}, v[{a}:{a+3}], v[{b}:{b+3}], {c if ti in first else '0'}")
                first[ti] = 1
                pump(issued + (3 if w == 0 else 2))
            pump(len(flat))
        A("s_mov_b32 exec_lo, 0xfff0fff0")
        A("s_mov_b32 exec_hi, 0xfff0fff0")
        for ti in range(4):
            A(f"ds_write_b128 v{VH}, v[{ZA+16*ti+12}:{ZA+16*ti+15}] offset:{256*tiles[ti]+16}")
        A("s_mov_b64 exec, -1")
        A("v_add_u32 v16, 16, v16")
        A("v_xor_b32 v18, 4, v16")
        A("s_waitcnt lgkmcnt(0)")
        A("ds_write_b32 v16, v17")
        A(f"s_mov_b32 s28, {opt.get('tmo', 0x40000) * 8}")
        A(f".L_hw{ty}:")
        A("ds_read_b32 v19, v18")
        A("s_sub_u32 s28, s28, 1")
        A(f"s_cbranch_scc1 .L_hx{ty}")
        A("s_waitcnt lgkmcnt(0)")
        A("v_readfirstlane_b32 s15, v19")
        A("s_cmp_eq_u32 s15, 0")
        A(f"s_cbranch_scc1 .L_hw{ty}")
        A(f".L_hx{ty}:")
        HR = 128
        for ti in range(4):
            A(f"ds_read_b128 v[{HR+4*ti}:{HR+4*ti+3}], v{VH} offset:{256*tiles[ti]}")
        if ty == 0: A("s_branch .L_tdone")
    A(".L_tdone:")
    stamp(A, opt, 4)
    HR = 128; S = 144; O = 192
    def z(ti, i): return HR + 4 * ti + 4 + i if i < 0 else ZA + 16 * ti + i
    for ti in range(4):
        for i in range(9):
            A(f"v_add_f32_dpp v{S+12*ti+i}, v{z(ti,i+7)}, v{z(ti,i+5)} row_ror:8 row_mask:0xf bank_mask:0xc")
    for ti in range(4):
        for i in range(3, 9):
            A(f"v_add_f32_dpp v{S+12*ti+i}, v{z(ti,i-3)}, v{z(ti,i-1)} row_ror:8 row_mask:0xf bank_mask:0x3")
    A("s_waitcnt lgkmcnt(0)")
    for ti in range(4):
        for i in range(3):
            A(f"v_add_f32_dpp v{S+12*ti+i}, v{z(ti,i-3)}, v{z(ti,i-1)} row_ror:8 row_mask:0xf bank_mask:0x3")
    A("s_lshl_b32 s14, s17, 16")
    A("s_and_b32 s15, s17, 0xffff0000")
    A("s_bitcmp0_b32 s12, 0")
    A("s_cselect_b32 s14, s14, s15")
    A("s_lshl_b32 s12, s12, 12")
    A(f"s_add_u32 s12, s12, {YT_OFF}")
    for p in range(2):
        a_, b_ = S + 12 * (2 * p), S + 12 * (2 * p + 1)
        for k in range(8):
            A(f"v_add_f32_dpp v{O+8*p+k}, v{a_+k}, v{a_+k+1} row_shl:4 row_mask:0xf bank_mask:0x5")
        for k in range(8):
            A(f"v_add_f32_dpp v{O+8*p+k}, v{b_+k+1}, v{b_+k} row_shr:4 row_mask:0xf bank_mask:0xa")
    T = 64
    for p in range(2):
        for b in range(4):
            A(f"v_lshlrev_b32 v{T+8*p+b}, 16, v{U+4*p+b}")
            A(f"v_and_b32 v{T+8*p+b+4}, 0xffff0000, v{U+4*p+b}")
        for k in range(8): A(f"v_fmac_f32 v{O+8*p+k}, s14, v{T+8*p+k}")
        for k in range(4): A(f"v_cvt_pk_bf16_f32 v{80+4*p+k}, v{O+8*p+2*k}, v{O+8*p+2*k+1}")
        A(f"buffer_store_dwordx4 v[{80+4*p}:{83+4*p}], v{VY}, {SW}, s12 offen offset:{2048*p} sc1")
    if opt.get("ywait") == 2:
        A(f"v_mov_b32 v11, {FL+48}")
        A("v_mov_b32 v12, 1")
        A("s_mov_b64 exec, 1")
        A("ds_add_u32 v11, v12")
        A("s_mov_b64 exec, -1")
    A("v_and_b32 v8, 31, v1")
    A("v_lshlrev_b32 v8, 2, v8")
    A("s_lshl_b32 s14, s9, 7")
    A(f"s_add_u32 s14, s14, {FY_OFF}")
    A("v_lshrrev_b32 v9, 1, v1")
    A("v_lshlrev_b32 v9, 12, v9")
    A("v_and_b32 v10, 1, v1")
    A("v_lshl_add_u32 v9, v10, 4, v9")
    A(f"v_add_u32 v10, {32*4096}, v9")
    A("s_lshl_b32 s15, s9, 18")
    A("s_lshl_b32 s26, s8, 7")
    A("s_add_u32 s15, s15, s26")
    A("s_lshl_b32 s26, s10, 5")
    A("s_add_u32 s15, s15, s26")
    A(f"s_add_u32 s15, s15, {YT_OFF}")
    A(f"v_mov_b32 v11, {FL+36}")
    A("v_mov_b32 v12, 1")
    A("s_waitcnt vmcnt(0)")
    stamp(A, opt, 5)
    A("s_mov_b64 exec, 1")
    A("ds_add_rtn_u32 v13, v11, v12")
    A("s_waitcnt lgkmcnt(0)")
    A("v_readfirstlane_b32 s26, v13")
    A("s_cmp_lg_u32 s26, 3")
    A("s_cbranch_scc1 .L_nosig")
    A("s_lshl_b32 s26, s2, 2")
    A(f"s_add_u32 s26, s26, {FY_OFF}")
    A("v_mov_b32 v13, 0")
    A(f"buffer_store_dword v17, v13, {SW}, s26 offen sc1")
    A(".L_nosig:")
    A("s_mov_b64 exec, -1")
    if not opt.get("xearly"):
        A(f"buffer_load_dwordx4 v[{XR}:{XR+3}], v{VO}, {SX}, s24 offen")
        A(f"buffer_load_dwordx4 v[{XR+4}:{XR+7}], v{VO}, {SX}, s24 offen offset:64")
    if "ytrig" in opt:
        A(f"s_mov_b32 s28, {opt.get('tmo', 0x40000) * 8}")
        A(".L_yd:")
        A("ds_read_b32 v13, v11 offset:16")
        A("s_sub_u32 s28, s28, 1")
        A("s_cbranch_scc1 .L_ydx")
        A("s_waitcnt lgkmcnt(0)")
        A("v_readfirstlane_b32 s26, v13")
        A("s_cmp_eq_u32 s26, 4")
        A("s_cbranch_scc1 .L_ydx")
        A("s_sleep 2")
        A("s_branch .L_yd")
        A(".L_ydx:")
    A(f"s_mov_b32 s28, {opt.get('tmo', 0x40000)}")
    A(".L_poll:")
    A(f"buffer_load_dword v13, v8, {SW}, s14 offen sc1")
    A("s_sub_u32 s28, s28, 1")
    A("s_cbranch_scc1 .L_got")
    A("s_waitcnt vmcnt(0)")
    A("v_cmp_ne_u32 vcc, s34, v13")
    A("s_cbranch_vccz .L_got")
    A(f"s_sleep {opt.get('psleep', 4)}")
    A("s_branch .L_poll")
    A(".L_got:")
    A(f"buffer_load_dwordx4 v[64:67], v9, {SW}, s15 offen sc1")
    A(f"buffer_load_dwordx4 v[68:71], v10, {SW}, s15 offen sc1")
    stamp(A, opt, 6)
    A("s_lshl_b32 s26, s11, 11")
    A("s_add_u32 s26, s26, s13")
    A("v_lshl_add_u32 v11, v1, 4, s26")
    A("v_lshrrev_b32 v12, 4, v1")
    A("v_lshlrev_b32 v12, 8, v12")
    A("v_and_b32 v13, 15, v1")
    A("v_lshl_add_u32 v12, v13, 3, v12")
    A("v_add_u32 v12, s26, v12")
    A("v_lshrrev_b32 v14, 4, v1")
    A("v_lshlrev_b32 v14, 11, v14")
    A("v_lshl_add_u32 v14, v13, 4, v14")
    A("s_lshl_b32 s27, s10, 8")
    A("v_add_u32 v14, s27, v14")
    R = 96
    for q in range(8):
        A(f"v_lshlrev_b32 v{R+2*q}, 16, v{XR+q}")
        A(f"v_and_b32 v{R+2*q+1}, 0xffff0000, v{XR+q}")
    A("s_waitcnt vmcnt(0)")
    A("ds_write_b128 v11, v[64:67]")
    A("ds_write_b128 v11, v[68:71] offset:1024")
    A("s_waitcnt lgkmcnt(0)")
    for hf in range(2):
        for n in range(2):
            A(f"ds_read_b64_tr_b16 v[{72+4*hf+2*n}:{73+4*hf+2*n}], v12 offset:{hf*1024+n*128}")
    A("s_waitcnt lgkmcnt(0)")
    for q in range(8):
        A(f"v_lshlrev_b32 v{80+2*(q&3)}, 16, v{72+q}")
        A(f"v_and_b32 v{81+2*(q&3)}, 0xffff0000, v{72+q}")
        A(f"v_add_f32 v{R+2*q}, v{R+2*q}, v{80+2*(q&3)}")
        A(f"v_add_f32 v{R+2*q+1}, v{R+2*q+1}, v{81+2*(q&3)}")
        A(f"v_cvt_pk_bf16_f32 v{R+2*q+1}, v{R+2*q}, v{R+2*q+1}")
    for q in range(8):
        A(f"v_lshlrev_b32 v{R+2*q}, 16, v{R+2*q+1}")
        A(f"v_and_b32 v{R+2*q+1}, 0xffff0000, v{R+2*q+1}")
    stamp(A, opt, 7)
    A("s_barrier")
    A("s_lshl_b32 s15, s2, 2")
    A("s_add_u32 s15, s15, s10")
    A("s_cmp_lg_u32 s15, 0")
    A("s_cbranch_scc1 .L_noep")
    A(f"v_mov_b32 v13, {EP_OFF}")
    A("s_mov_b64 exec, 1")
    A(f"buffer_store_dword v17, v13, {SW}, 0 offen sc1")
    A("s_mov_b64 exec, -1")
    A(".L_noep:")
    P = 128
    for hf in range(2):
        for j in range(2):
            for q in range(4):
                b = P + (hf * 2 + j) * 16 + q * 4
                A(f"ds_read_b128 v[{b}:{b+3}], v14 offset:{q*8192 + hf*32768 + j*1024}")
    for hf in range(2):
        for j in range(2):
            n = hf * 2 + j; b = P + n * 16
            A(f"s_waitcnt lgkmcnt({12-4*n})")
            for e in range(0, 4, 2):
                A(f"v_pk_add_f32 v[{b+e}:{b+e+1}], v[{b+e}:{b+e+1}], v[{b+4+e}:{b+5+e}]")
                A(f"v_pk_add_f32 v[{b+8+e}:{b+9+e}], v[{b+8+e}:{b+9+e}], v[{b+12+e}:{b+13+e}]")
            for e in range(0, 4, 2):
                A(f"v_pk_add_f32 v[{b+e}:{b+e+1}], v[{b+e}:{b+e+1}], v[{b+8+e}:{b+9+e}]")
            for e in range(0, 4, 2):
                A(f"v_cvt_pk_bf16_f32 v{b+e+1}, v{b+e}, v{b+e+1}")
            for e in range(0, 4, 2):
                A(f"v_lshlrev_b32 v{b+e}, 16, v{b+e+1}")
                A(f"v_and_b32 v{b+e+1}, 0xffff0000, v{b+e+1}")
            for e in range(0, 4, 2):
                r = R + 4 * n + e
                A(f"v_pk_add_f32 v[{b+e}:{b+e+1}], v[{b+e}:{b+e+1}], v[{r}:{r+1}]")
            for e in range(0, 4, 2):
                A(f"v_cvt_pk_bf16_f32 v{64+2*n+e//2}, v{b+e}, v{b+e+1}")
        A(f"buffer_store_dwordx4 v[{64+4*hf}:{67+4*hf}], v{VO}, {SO}, s24 offen offset:{64*hf}")
    A("s_branch .L_fin")
    A(".L_w03:")
    if opt.get("gprio", 1): A(f"s_setprio {opt.get('gprio', 1)}")
    ACC = 128; WF = 64; XF = 96; CSA = 16; CSB = 32
    XP = 96
    A("s_lshl_b32 s10, s2, 2")
    A("s_add_u32 s10, s10, s3")
    A("s_and_b32 s11, s10, -2")
    A("v_mov_b32 v105, s11")
    A("s_lshl_b32 s10, s10, 7")
    A("v_lshl_add_u32 v104, v1, 1, s10")
    for r in range(XP, XP + 7): A(f"v_mov_b32 v{r}, 0")
    A(f"s_mov_b32 s15, {EP_OFF}")
    A("s_cmp_ge_u32 s7, 28")
    A("s_waitcnt lgkmcnt(0)")
    A(f"global_load_short_d16_hi v{XP+6}, v105, s[30:31]")
    for k in range(6): A(f"global_load_short_d16_hi v{XP+k}, v104, s[{18+2*k}:{19+2*k}]")
    A("s_cbranch_scc1 .L_xtag")
    A("s_load_dword s34, s[46:47], s15")
    A(".L_xtag:")
    A("s_lshl_b32 s10, s3, 13")
    A("s_add_u32 s10, s10, 65536")
    for x in tab_waddr(112, "s10"): A(x)
    A("v_and_b32 v60, 31, v1")
    A("v_lshrrev_b32 v61, 5, v1")
    A("v_bfe_u32 v62, v1, 1, 3")
    A("v_xor_b32 v62, v62, v61")
    A("v_lshlrev_b32 v62, 4, v62")
    A("v_lshl_add_u32 v62, v60, 7, v62")
    A("s_lshl_b32 s10, s3, 13")
    A("v_add_u32 v2, s10, v62")
    for kp in range(1, 4): A(f"v_xor_b32 v{2+kp}, {kp*32}, v2")
    for kp in range(4): A(f"v_add_u32 v{6+kp}, 0x10000, v{2+kp}")
    A("v_bfe_u32 v62, v1, 4, 1")
    A("v_lshlrev_b32 v10, 11, v62")
    A("v_lshl_add_u32 v10, v61, 10, v10")
    A("v_bfe_u32 v63, v1, 2, 2")
    A("v_lshl_add_u32 v10, v63, 7, v10")
    A("v_and_b32 v63, 3, v1")
    A("v_lshl_add_u32 v10, v63, 3, v10")
    A("v_bfe_u32 v63, v1, 3, 2")
    A("v_lshl_add_u32 v10, v63, 5, v10")
    A(f"v_add_u32 v10, {WR}, v10")
    for tp in range(1, 4): A(f"v_xor_b32 v{10+tp}, {tp*32}, v10")
    for r in range(CSA, CSB + 8): A(f"v_mov_b32 v{r}, 0")
    A("s_lshl_b32 s11, s3, 8")
    A(f"s_add_u32 s11, s11, {STL}")
    A("v_lshl_add_u32 v48, v60, 2, s11")
    A(f"v_lshlrev_b32 v49, 2, v60")
    A(f"v_add_u32 v49, {CSL}, v49")
    A(f"v_mov_b32 v50, {FL+32}")
    A("s_mov_b32 vcc_lo, -1"); A("s_mov_b32 vcc_hi, 0")
    A("s_lshl_b32 s12, s4, 2")
    A("s_add_u32 s12, s12, s3")
    A("s_mul_i32 s12, s12, 224")
    A("s_mul_i32 s13, s5, 7")
    A("s_add_u32 s13, s13, s9")
    A("s_lshl_b32 s13, s13, 2")
    A("s_add_u32 s12, s12, s13")
    A("s_lshl_b32 s12, s12, 10")
    A(f"s_add_u32 s13, s12, {112*1024}")
    A("v_lshlrev_b32 v51, 4, v1")
    for x in srds(): A(x)
    stamp(A, opt, 1, 2)
    A("s_waitcnt vmcnt(0)")
    stamp(A, opt, 2, 2)
    for x in kgen_x(XP, 112): A(x)
    A("s_cmp_ge_u32 s7, 28")
    A("s_waitcnt lgkmcnt(0)")
    A("s_cbranch_scc1 .L_auxbar")
    lg = Cnt(A, "lgkmcnt", 15)
    def reads(s):
        i, kp, h = s >> 2, s & 3, s >> 1
        xb = XF + 8 * (s & 1); wb = WF + 16 * (s & 1)
        xa = (6 if i % 3 == 2 else 2) + kp; xo = 32768 if i % 3 == 1 else 0
        X = lambda tb: (f"ds_read_b128 v[{xb+4*tb}:{xb+4*tb+3}], v{xa} offset:{xo+tb*4096}", ("x", s, tb))
        o = (h & 3) * 8192 + (s & 1) * 4096
        W = lambda tp: [(f"ds_read_b64_tr_b16 v[{wb+4*tp}:{wb+4*tp+1}], v{10+tp} offset:{o}", ("w", s, tp)),
                        (f"ds_read_b64_tr_b16 v[{wb+4*tp+2}:{wb+4*tp+3}], v{10+tp} offset:{o+512}", ("w", s, tp))]
        return [X(0)] + W(0) + [X(1)] + W(1) + W(2) + W(3)
    stamp(A, opt, 1)
    A("s_barrier")
    stamp(A, opt, 2)
    for t, g in reads(0): lg.op(t, g)
    c1 = -2 * 0.7978845608028654 * LOG2E
    KC = 40
    for s in range(32):
        R = reads(s + 1) if s < 31 else []
        extra = []
        if s == 29:
            R += [(f"ds_read_b32 v{52+tb}, v48 offset:{tb*128}", "st") for tb in range(2)]
        if s == 30:
            R += [(f"ds_read_b32 v{CSA+4*tp}, v49 offset:{tp*128}", "cs") for tp in range(4)]
        if s == 31:
            for tb in range(2):
                k = KC + 4 * tb; d = 52 + tb
                extra += [f"v_and_b32 v{k+2}, 0xffff0000, v{d}", f"v_and_b32 v{d}, 0xffff, v{d}", f"v_rcp_f32 v{k+1}, v{k+2}", f"v_lshl_or_b32 v{d}, v{d}, 16, v{d}",
                          f"v_mul_f32 v{k+2}, v{k+2}, v{k+2}", f"v_cndmask_b32 v{CSB+4*tb}, 0, v{d}, vcc", f"v_mul_f32 v{k}, {fhex(c1)}, v{k+1}", f"v_mul_f32 v{k+1}, v{k+1}, v{k+1}",
                          f"v_mul_f32 v{k+1}, {fhex(0.044715)}, v{k+1}", f"v_mul_f32 v{k+1}, v{k}, v{k+1}"]
        bar = s & 1
        for n in range(8):
            tp, tb = n >> 1, n & 1
            lg.wait(("x", s, tb), ("w", s, tp))
            c = f"v[{ACC+64*tb+16*tp}:{ACC+64*tb+16*tp+15}]"
            a = WF + 16 * (s & 1) + 4 * tp; b = XF + 8 * (s & 1) + 4 * tb
            A(f"v_mfma_f32_32x32x16_bf16 {c}, v[{a}:{a+3}], v[{b}:{b+3}], {'0' if s == 0 else c}")
            if bar and n == 0:
                hb = (s + 1) >> 1
                lg.all()
                if opt.get("stamps") == 3 and hb in (2, 4, 6, 8): stamp(A, opt, hb - 1, 3)
                if opt.get("stamps") == 4 and hb in (9, 11, 13, 15): stamp(A, opt, hb - 8, 4)
                bstamp(A, opt, hb, 0)
                A("s_barrier")
                bstamp(A, opt, hb, 1)
                if opt.get("stamps") == 3 and hb in (2, 4, 6, 8): stamp(A, opt, hb, 3)
                if opt.get("stamps") == 4 and hb in (9, 11, 13, 15): stamp(A, opt, hb - 7, 4)
                if s == 15: stamp(A, opt, 3)
            for _ in range(2 if len(R) <= 2 * (7 - n) else 3):
                if R: lg.op(*R.pop(0))
            for _ in range(3):
                if extra: A(extra.pop(0))
    assert not R and not extra
    for n in range(8):
        tb, tp = n >> 2, n & 3
        c = f"v[{ACC+64*tb+16*tp}:{ACC+64*tb+16*tp+15}]"
        A(f"v_mfma_f32_32x32x16_bf16 {c}, v[{CSA+4*tp}:{CSA+4*tp+3}], v[{CSB+4*tb}:{CSB+4*tb+3}], {c}")
    stamp(A, opt, 4)
    if "eprio" in opt: A(f"s_setprio {opt['eprio']}")
    for n in range(8):
        tb, tp = n >> 2, n & 3
        g = lambda e: ACC + 64 * tb + 16 * tp + e
        u = lambda e: g(e) + 8
        T = 64 + (n & 1) * 16; k = KC + 4 * tb
        if opt.get("pk"):
            pr = lambda r: f"v[{r}:{r+1}]"
            for e in range(0, 8, 2): A(f"v_pk_mul_f32 {pr(T+e)}, {pr(g(e))}, {pr(g(e))}")
            for e in range(0, 8, 2): A(f"v_pk_fma_f32 {pr(T+e)}, {pr(T+e)}, {pr(k)}, {pr(k)} op_sel:[0,1,0] op_sel_hi:[1,1,0]")
            for e in range(0, 8, 2): A(f"v_pk_mul_f32 {pr(T+e)}, {pr(T+e)}, {pr(g(e))}")
            for e in range(0, 8, 2):
                A(f"v_exp_f32 v{T+e}, v{T+e}"); A(f"v_exp_f32 v{T+e+1}, v{T+e+1}")
                A(f"v_pk_mul_f32 {pr(g(e))}, {pr(g(e))}, {pr(u(e))}")
            for e in range(0, 8, 2): A(f"v_pk_fma_f32 {pr(T+e)}, {pr(T+e)}, {pr(k+2)}, {pr(k+2)} op_sel:[0,0,0] op_sel_hi:[1,0,0]")
            for e in range(8): A(f"v_rcp_f32 v{T+e}, v{T+e}")
            for e in range(0, 8, 2): A(f"v_pk_mul_f32 {pr(g(e))}, {pr(g(e))}, {pr(T+e)}")
        else:
            for e in range(8): A(f"v_mul_f32 v{T+e}, v{g(e)}, v{g(e)}")
            for e in range(8): A(f"v_fma_f32 v{T+e}, v{T+e}, v{k+1}, v{k}")
            for e in range(8): A(f"v_mul_f32 v{T+e}, v{T+e}, v{g(e)}")
            for e in range(8):
                A(f"v_exp_f32 v{T+e}, v{T+e}")
                A(f"v_mul_f32 v{g(e)}, v{g(e)}, v{u(e)}")
            for e in range(8): A(f"v_fma_f32 v{T+e}, v{T+e}, v{k+2}, v{k+2}")
            for e in range(8): A(f"v_rcp_f32 v{T+e}, v{T+e}")
            for e in range(8): A(f"v_mul_f32 v{g(e)}, v{g(e)}, v{T+e}")
        for q in range(4): A(f"v_cvt_pk_bf16_f32 v{T+8+q}, v{g(2*q)}, v{g(2*q+1)}")
        A(f"buffer_store_dwordx4 v[{T+8}:{T+11}], v51, {SW}, s{12+tb} offen offset:{tp*1024} sc1")
    A("v_mov_b32 v52, 1")
    for x in tagfix: A(x)
    A("v_mov_b32 v54, s34")
    A("s_lshl_b32 s12, s4, 2")
    A("s_add_u32 s12, s12, s5")
    A("s_lshl_b32 s12, s12, 5")
    A("s_add_u32 s12, s12, s9")
    A("s_lshl_b32 s12, s12, 2")
    A(f"s_add_u32 s12, s12, {FH_OFF}")
    stamp(A, opt, 5)
    A("s_waitcnt vmcnt(0)")
    A("s_mov_b64 exec, 1")
    A("ds_add_rtn_u32 v53, v50, v52")
    A("s_waitcnt lgkmcnt(0)")
    A("v_readfirstlane_b32 s13, v53")
    A("s_cmp_lg_u32 s13, 3")
    A("s_cbranch_scc1 .L_nohs")
    A("v_mov_b32 v53, 0")
    A(f"buffer_store_dword v54, v53, {SW}, s12 offen sc1")
    A(".L_nohs:")
    A("s_mov_b64 exec, -1")
    A(".L_g2:")
    ACC = 64; HF = 128; WF = 32; DH = opt.get("DH", 16)
    hld = opt.get("hld", " sc1")
    A(f"v_mov_b32 v16, {FL}")
    A("v_lshlrev_b32 v2, 4, v1")
    A(f"v_add_u32 v3, {112*1024}, v2")
    A("v_lshrrev_b32 v8, 3, v1")
    A("v_and_b32 v9, 7, v1")
    A("v_bfe_u32 v10, v1, 4, 1")
    A("v_lshlrev_b32 v10, 2, v10")
    A("v_xor_b32 v9, v9, v10")
    A("v_lshlrev_b32 v9, 4, v9")
    A("v_lshl_add_u32 v4, v8, 10, v9")
    A("v_add_u32 v5, 7168, v4")
    A("s_mul_i32 s11, s3, 28")
    A("s_mul_i32 s12, s8, 224")
    A("s_add_u32 s12, s12, s11")
    A("s_lshl_b32 s12, s12, 10")
    A("v_add_u32 v2, s12, v2")
    A("v_add_u32 v3, s12, v3")
    A("s_lshl_b32 s13, s11, 14")
    A("s_lshl_b32 s14, s9, 7")
    A("s_add_u32 s13, s13, s14")
    A("v_add_u32 v4, s13, v4")
    A("v_add_u32 v5, s13, v5")
    for x in rot_phase("s12", 10): A(x)
    A("s_lshl_b32 s13, s12, 4")
    A("s_lshl_b32 s15, s3, 13")
    A("v_lshrrev_b32 v8, 5, v1")
    A("v_bfe_u32 v9, v1, 2, 2")
    A("v_lshl_add_u32 v8, v8, 2, v9")
    A("v_lshlrev_b32 v8, 7, v8")
    A("v_bfe_u32 v9, v1, 4, 1")
    A("v_lshl_add_u32 v8, v9, 5, v8")
    A("v_and_b32 v9, 3, v1")
    A("v_lshl_add_u32 v8, v9, 3, v8")
    A("v_bfe_u32 v9, v1, 3, 1")
    A("v_lshl_add_u32 v8, v9, 6, v8")
    A("v_add_u32 v6, s15, v8")
    A("v_xor_b32 v7, 64, v6")
    A("v_add_u32 v8, 0x10000, v6")
    A("v_add_u32 v9, 0x10000, v7")
    A("v_min_u32 v10, 6, v1")
    A("v_lshlrev_b32 v10, 2, v10")
    A("s_lshr_b32 s14, s8, 2")
    A("s_lshl_b32 s14, s14, 2")
    A("s_add_u32 s14, s14, s3")
    A("s_lshl_b32 s14, s14, 7")
    A(f"s_add_u32 s14, s14, {FH_OFF}")
    A(f"s_mov_b32 s28, {opt.get('tmo', 0x40000) * 8}")
    A(".L_wf:")
    A("ds_read_b32 v17, v16")
    A("s_sub_u32 s28, s28, 1")
    A("s_cbranch_scc1 .L_wfx")
    A("s_waitcnt lgkmcnt(0)")
    A("v_readfirstlane_b32 s29, v17")
    A("s_cmp_eq_u32 s29, 2")
    A("s_cbranch_scc1 .L_wfx")
    A("s_sleep 1")
    A("s_branch .L_wf")
    A(".L_wfx:")
    stamp(A, opt, 6)
    def trW(s):
        b = WF + (s & 1) * 8
        o = RREG[(s & 15) >> 2] + (s & 3) * 2048
        base = 8 if o >= 65536 else 6; o &= 65535
        for cb in range(2):
            A(f"ds_read_b64_tr_b16 v[{b+4*cb}:{b+4*cb+1}], v{base+cb} offset:{o}")
            A(f"ds_read_b64_tr_b16 v[{b+4*cb+2}:{b+4*cb+3}], v{base+cb} offset:{o+1024}")
    trW(0)
    A(f"s_mov_b32 s28, {opt.get('tmo', 0x40000)}")
    A(".L_hp:")
    A(f"buffer_load_dword v17, v10, {SW}, s14 offen sc1")
    A("s_sub_u32 s28, s28, 1")
    A("s_cbranch_scc1 .L_hpx")
    A("s_waitcnt vmcnt(0)")
    A("v_cmp_ne_u32 vcc, s34, v17")
    A("s_cbranch_vccz .L_hpx")
    A(f"s_sleep {opt.get('hsleep', 1)}")
    A("s_branch .L_hp")
    A(".L_hpx:")
    if opt.get("ywait"):
        A(f"s_mov_b32 s28, {opt.get('tmo', 0x40000) * 8}")
        A(".L_yw:")
        A(f"ds_read_b32 v17, v16 offset:{36 if opt['ywait'] == 1 else 48}")
        A("s_sub_u32 s28, s28, 1")
        A("s_cbranch_scc1 .L_ywx")
        A("s_waitcnt lgkmcnt(0)")
        A("v_readfirstlane_b32 s29, v17")
        A("s_cmp_eq_u32 s29, 4")
        A("s_cbranch_scc1 .L_ywx")
        A("s_sleep 1")
        A("s_branch .L_yw")
        A(".L_ywx:")
    stamp(A, opt, 7)
    v2 = Cnt(A, "vmcnt", 63)
    def ldH(s, th):
        if th == 0:
            for x in rot_off("s16", "s17", "s12", s, 10, wrot): A(x)
        b = HF + (s % DH) * 8 + th * 4
        v2.op(f"buffer_load_dwordx4 v[{b}:{b+3}], v{2+th}, {SW}, s16 offen{hld}", ("h", s, th))
    def dmaW(s, part):
        if part == 0:
            A(f"s_add_u32 m0, s15, {RREG[(s & 15) >> 2] + (s & 3) * 2048}")
            for x in rot_off("s18", "s19", "s13", s, 14, wrot): A(x)
            v2.op(f"buffer_load_dwordx4 v4, {SD}, s18 offen lds{wld}", ("d", s))
        else:
            v2.op(f"buffer_load_dwordx4 v5, {SD}, s18 offen offset:1024 lds{wld}", ("d", s))
    for s in range(DH): ldH(s, 0); ldH(s, 1)
    NS = 28
    for s in range(NS):
        if s + 1 < NS:
            if s + 1 >= 16: v2.wait(("d", s + 1))
            trW(s + 1)
            A("s_waitcnt lgkmcnt(4)")
        else:
            A("s_waitcnt lgkmcnt(0)")
        nx = s + DH < NS; nw = s + 16 < NS
        def M(cb, th):
            c = f"v[{ACC+16*(2*th+cb)}:{ACC+16*(2*th+cb)+15}]"
            a = WF + (s & 1) * 8 + 4 * cb; b = HF + (s % DH) * 8 + th * 4
            A(f"v_mfma_f32_32x32x16_bf16 {c}, v[{a}:{a+3}], v[{b}:{b+3}], {'0' if s == 0 else c}")
        if nw: dmaW(s + 16, 0); dmaW(s + 16, 1)
        v2.wait(("h", s, 0))
        if s == 0: stamp(A, opt, 8)
        M(0, 0)
        M(1, 0)
        if nx: ldH(s + DH, 0)
        v2.wait(("h", s, 1))
        M(0, 1)
        M(1, 1)
        if nx: ldH(s + DH, 1)
        if s == opt.get("ytrig"):
            A("v_mov_b32 v17, 1")
            A("s_mov_b64 exec, 1")
            A("ds_add_u32 v16, v17 offset:52")
            A("s_mov_b64 exec, -1")
    stamp(A, opt, 9)
    A("v_lshrrev_b32 v8, 5, v1")
    A("v_lshlrev_b32 v8, 10, v8")
    A("v_and_b32 v9, 31, v1")
    A("v_lshl_add_u32 v8, v9, 4, v8")
    A("v_add_u32 v8, s15, v8")
    for th in range(2):
        for cb in range(2):
            for rq in range(4):
                b = ACC + 16 * (2 * th + cb) + 4 * rq
                A(f"ds_write_b128 v8, v[{b}:{b+3}] offset:{cb*32768 + 2*rq*1024 + th*512}")
    A("s_waitcnt lgkmcnt(0)")
    A("s_barrier")
    A(".L_fin:")
    if opt.get("stamps"):
        A("s_waitcnt vmcnt(0)")
        A("s_memtime s[100:101]")
        A("s_memrealtime s[78:79]")
        A("s_waitcnt lgkmcnt(0)")
        for q in range(1, 11): A(f"s_sub_u32 s{80+2*q}, s{80+2*q}, s80")
        A("v_mov_b32 v64, s76"); A("v_mov_b32 v65, s78")
        for q in range(1, 11): A(f"v_mov_b32 v{65+q}, s{80+2*q}")
        A("s_lshl_b32 s14, s2, 3"); A("s_add_u32 s14, s14, s3"); A("s_lshl_b32 s14, s14, 6")
        A(f"s_add_u32 s14, s14, {STAMP_OFF}")
        A("v_mov_b32 v62, 0")
        A("s_mov_b64 exec, 1")
        for q in range(3): A(f"buffer_store_dwordx4 v[{64+4*q}:{67+4*q}], v62, {SW}, s14 offen offset:{16*q}")
    A(".L_end:")
    A("s_endpgm")
    return A.L

P = "parallel_sum__ssm_conv_s4__geglu_ffn__prompt"
def build(opt, fn):
    l, n = fix_hazards(gen_kf(opt), opt.get("verbose"))
    hdr = open("cdna_kernels/" + P + ".s.ref").read().split("; Override launch")[0]
    s = hdr + f"; @launch grid=(256,1,1) block=(512,1,1) lds={LDS_F}\n"
    s += '.amdgcn_target "amdgcn-amd-amdhsa--gfx950"\n'
    s += kernel_text(P + "_kernel", ["KSTART:"] + l, 256, 256)
    s += "CODE_END:\n    s_endpgm\n"
    s += kernel_desc(P + "_kernel", 256, 256)
    open(fn, "w").write(s)
    return n
if __name__ == "__main__":
    import sys, json
    opt = json.loads(sys.argv[2]) if len(sys.argv) > 2 else {}
    print("nops", build(opt, sys.argv[1]))
```
